```python
import torch

def _softmax(x, axis=-1):
    return torch.softmax(x, dim=axis)
def _gelu(x):
    return torch.nn.functional.gelu(x, approximate="tanh")
def _silu(x):
    return torch.nn.functional.silu(x)
def _sigmoid(x):
    return torch.sigmoid(x)
def _layernorm(x, axis=-1, eps=1e-5):
    m = x.mean(dim=axis, keepdim=True)
    v = x.var(dim=axis, keepdim=True, unbiased=False)
    return (x - m) / torch.sqrt(v + eps)
def _scatter_add(tgt, idx, src, axis=0):
    return tgt.clone().index_add_(axis, idx, src)
def _segment_sum(src, seg, n):
    out = torch.zeros((n,) + src.shape[1:], dtype=src.dtype)
    return out.index_add_(0, seg, src)
def _pad(x, pw):
    flat = tuple(v for pair in reversed(pw) for v in pair)
    return torch.nn.functional.pad(x, flat)

kernel_name = 'parallel_sum__ssm_conv_s5__dense_activation_silu__prompt'

def setup_inputs():

    _w = (lambda a: (lambda t: t.to(torch.bfloat16) if t.is_floating_point() else t)(torch.as_tensor(a)))
    def _A_setup():
        B, S, D = 1, 2048, 448
        P = D
        Lambda_re = -0.5 * (lambda _x: torch.exp(torch.as_tensor(_x)))((lambda *s: torch.randn(*s, dtype=torch.bfloat16) * 0.2)(P))
        Lambda_im = (lambda *s: torch.randn(*s, dtype=torch.bfloat16) * 0.8)(P) * 1.0
        B_re = (lambda *s: torch.randn(*s, dtype=torch.bfloat16) * 0.2)(P, D) * (D ** -0.5)
        B_im = (lambda *s: torch.randn(*s, dtype=torch.bfloat16) * 0.2)(P, D) * (D ** -0.5)
        C_re = (lambda *s: torch.randn(*s, dtype=torch.bfloat16) * 0.2)(D, P) * (P ** -0.5)
        C_im = (lambda *s: torch.randn(*s, dtype=torch.bfloat16) * 0.2)(D, P) * (P ** -0.5)
        log_dt = (lambda *s: torch.randn(*s, dtype=torch.bfloat16) * 0.2)(P) * 0.3 - 2.0
        Dskip = (lambda *s: torch.randn(*s, dtype=torch.bfloat16) * 0.05)(D)
        return {
            "x": _w((lambda *s: torch.randn(*s, dtype=torch.bfloat16) * 0.05)(B, S, D)),
            "Lambda_re": _w(Lambda_re),
            "Lambda_im": _w(Lambda_im),
            "B_re": _w(B_re),
            "B_im": _w(B_im),
            "C_re": _w(C_re),
            "C_im": _w(C_im),
            "log_dt": _w(log_dt),
            "Dskip": _w(Dskip),
        }
    _A_in = _A_setup()

    def _B_setup():
        B, S, D, F = 1, 2048, 448, 1792
        return {
            "x": _w((lambda *s: torch.randn(*s, dtype=torch.bfloat16) * 0.05)(B, S, D)),
            "w1": _w((lambda *s: torch.randn(*s, dtype=torch.bfloat16) * 0.8)(D, F) * (D ** -0.5)),
            "w2": _w((lambda *s: torch.randn(*s, dtype=torch.bfloat16) * 0.2)(F, D) * (F ** -0.5)),
        }
    _B_in = _B_setup()

    return {
        "A_x": _A_in["x"],
        "A_Lambda_re": _A_in["Lambda_re"],
        "A_Lambda_im": _A_in["Lambda_im"],
        "A_B_re": _A_in["B_re"],
        "A_B_im": _A_in["B_im"],
        "A_C_re": _A_in["C_re"],
        "A_C_im": _A_in["C_im"],
        "A_log_dt": _A_in["log_dt"],
        "A_Dskip": _A_in["Dskip"],
        "B_x": _B_in["x"],
        "B_w1": _B_in["w1"],
        "B_w2": _B_in["w2"],
    }

def reference(A_x, A_Lambda_re, A_Lambda_im, A_B_re, A_B_im, A_C_re, A_C_im, A_log_dt, A_Dskip, B_x, B_w1, B_w2):
    def _A_ref(x, Lambda_re, Lambda_im, B_re, B_im, C_re, C_im, log_dt, Dskip):
        Bsz, L, H = x.shape
        Lam = Lambda_re + 1j * Lambda_im
        Bmat = B_re + 1j * B_im
        Cmat = C_re + 1j * C_im
        dt = torch.exp(log_dt)
        Lam_bar = torch.exp(dt * Lam)
        B_bar = ((Lam_bar - 1.0) / Lam)[:, None] * Bmat
        Bu = torch.einsum("bld,pd->blp", x + 0j, B_bar)
        h = torch.zeros_like(Bu[:, 0, :])
        hs = []
        for t in range(L):
            h = Lam_bar[None, :] * h + Bu[:, t, :]
            hs.append(h)
        hseq = torch.stack(hs, 1)
        y = 2.0 * torch.einsum("blp,dp->bld", hseq, Cmat).real + x * Dskip[None, None, :]
        return y

    def _B_ref(x, w1, w2):
        h = torch.einsum("bsd,df->bsf", x, w1)
        h = _silu(h)
        out = torch.einsum("bsf,fd->bsd", h, w2)
        return out

    x = A_x
    xn = _layernorm(x, axis=-1)
    return x + _A_ref(xn, A_Lambda_re, A_Lambda_im, A_B_re, A_B_im, A_C_re, A_C_im, A_log_dt, A_Dskip) + _B_ref(xn, B_w1, B_w2)
```

```python
import re

_REG = re.compile(r'(?<![\w.])([vas])(?:(\d+)|\[(\d+):(\d+)\])(?![\w])')
def regs_of(tok):
    out = []
    for m in _REG.finditer(tok):
        k = m.group(1)
        if m.group(2) is not None:
            out.append((k, int(m.group(2))))
        else:
            out += [(k, i) for i in range(int(m.group(3)), int(m.group(4)) + 1)]
    if re.search(r'\bvcc\b', tok): out += [('s', 'vcc')]
    if re.search(r'\bexec\b', tok): out += [('s', 'exec')]
    if re.search(r'\bm0\b', tok): out += [('s', 'm0')]
    return out

def split_ops(s):
    ops, depth, cur = [], 0, ''
    for ch in s:
        if ch == '[': depth += 1
        if ch == ']': depth -= 1
        if ch == ',' and depth == 0:
            ops.append(cur.strip()); cur = ''
        else:
            cur += ch
    if cur.strip(): ops.append(cur.strip())
    return ops

TRANS = ('v_exp_f32', 'v_log_f32', 'v_rcp_f32', 'v_rsq_f32', 'v_sqrt_f32', 'v_sin_f32', 'v_cos_f32')
NODST_S = ('s_cmp', 's_waitcnt', 's_barrier', 's_nop', 's_branch', 's_cbranch', 's_sleep', 's_setprio', 's_endpgm', 's_bitcmp')

class Ins:
    __slots__ = ('text', 'op', 'kind', 'dst', 'src', 'srcc', 'ab', 'dpp', 'wide_store', 'data', 'passes')
    def __init__(self, text):
        self.text = text
        t = text.split(';')[0].strip()
        self.op = t.split()[0] if t else ''
        rest = t[len(self.op):].strip()
        ops = split_ops(rest)
        self.dpp = ('quad_perm' in t or 'row_' in t or '_dpp' in self.op)
        self.dst, self.src, self.srcc, self.ab, self.data = [], [], [], [], []
        self.wide_store = False
        self.passes = 0
        op = self.op
        R = [regs_of(o.split(' ')[0] if not o.startswith('-') else o) for o in ops]
        if ops:
            R[-1] = regs_of(ops[-1].split(' ')[0])
        if t.endswith(':') or not t or t.startswith('.'):
            self.kind = 'label'
        elif op.startswith('v_mfma'):
            self.kind = 'mfma'
            self.dst = R[0]; self.ab = R[1] + R[2]; self.srcc = R[3]; self.src = self.ab + self.srcc
            self.passes = 8 if '32x32x16' in op else 4
        elif op.startswith('v_'):
            self.kind = 'valu'
            if 'permlane' in op and 'swap' in op:
                self.dst = R[0] + R[1]; self.src = R[0] + R[1]
            elif op.startswith(('v_add_co', 'v_sub_co', 'v_addc_co', 'v_subb_co', 'v_subrev_co')):
                self.dst = R[0] + R[1]; self.src = sum(R[2:], [])
            else:
                self.dst = R[0]; self.src = sum(R[1:], [])
                if op.startswith(('v_fmac', 'v_dot2c', 'v_pk_fmac', 'v_writelane')) or self.dpp:
                    self.src = self.src + R[0]
        elif op.startswith('ds_'):
            self.kind = 'ds'
            if op.startswith(('ds_read', 'ds_bpermute', 'ds_swizzle', 'ds_permute')):
                self.dst = R[0]; self.src = sum(R[1:], [])
            else:
                self.src = sum(R, [])
        elif op.startswith(('buffer_', 'global_')):
            self.kind = 'vmem'
            toks = t.split()
            if op.startswith(('buffer_wbl2', 'buffer_inv')):
                pass
            elif 'lds' in toks or '_lds_' in op:
                self.src = sum(R, []) + [('s', 'm0')]
            elif '_load' in op:
                self.dst = R[0]; self.src = sum(R[1:], [])
            else:
                self.src = sum(R, [])
                if op.startswith('buffer_'): self.data = R[0]
                else: self.data = R[1]
                if 'x3' in op or 'x4' in op: self.wide_store = True
                if 'atomic' in op and 'sc0' in toks:
                    self.dst = R[0]
        elif op.startswith('s_'):
            self.kind = 'salu'
            if op.startswith(('s_load', 's_memtime', 's_memrealtime', 's_buffer_load')):
                self.kind = 'smem'
            if op.startswith(NODST_S):
                self.src = sum(R, [])
            else:
                self.dst = R[0] if R else []; self.src = sum(R[1:], [])
                if 'saveexec' in op: self.dst = self.dst + [('s', 'exec')]
        else:
            raise ValueError('unknown instruction: ' + text)

def hazard_pass(lines):
    out = []
    pos = 0
    valu_w, trans_w, mfma_w, mfma_c, valu_sw, store_d, salu_m0 = {}, {}, {}, {}, {}, {}, [-99]
    nins = 0
    for text in lines:
        I = Ins(text)
        if I.kind == 'label':
            out.append(text); continue
        need = pos
        def req(p, n):
            nonlocal need
            need = max(need, p + 1 + n)
        if I.kind == 'mfma':
            for r in I.src:
                if r in valu_w: req(valu_w[r], 2)
            for r in I.ab:
                if r in mfma_w: req(mfma_w[r][0], {8: 12, 4: 8}[mfma_w[r][1]])
            for r in I.srcc:
                if r in mfma_w:
                    p, ps, rng = mfma_w[r]
                    if not (rng == tuple(I.srcc) and ps == I.passes):
                        req(p, {8: 10, 4: 6}[ps])
            for r in I.dst:
                if r in mfma_w and r not in I.srcc:
                    p, ps, rng = mfma_w[r]
                    req(p, {8: 10, 4: 6}[ps])
        else:
            touch = (I.src + I.dst) if I.kind in ('valu', 'ds', 'vmem') else []
            for r in touch:
                if r in mfma_w: req(mfma_w[r][0], {8: 12, 4: 8}[mfma_w[r][1]])
            if I.kind == 'valu':
                for r in I.dst:
                    if r in mfma_c: req(mfma_c[r][0], {8: 7, 4: 3}[mfma_c[r][1]])
                    if r in store_d: req(store_d[r], 2)
                for r in I.src:
                    if r in trans_w and not I.op.startswith(TRANS): req(trans_w[r], 1)
                    if r in trans_w and I.op.startswith(TRANS): req(trans_w[r], 1)
                    if r[0] == 's' and r in valu_sw:
                        req(valu_sw[r], 4 if I.op.startswith(('v_readlane', 'v_writelane')) else 2)
                    if r[0] in 'va' and r in valu_w:
                        if I.dpp or 'permlane' in I.op: req(valu_w[r], 2)
                        if I.op.startswith(('v_readfirstlane', 'v_readlane')): req(valu_w[r], 1)
            if I.kind in ('vmem', 'ds'):
                for r in I.src:
                    if r[0] == 's' and r in valu_sw: req(valu_sw[r], 5)
                for r in I.dst:
                    if r in store_d: req(store_d[r], 1)
                if ('s', 'm0') in I.src: req(salu_m0[0], 1)
            if I.kind in ('salu', 'smem'):
                for r in I.src:
                    if r in valu_sw: req(valu_sw[r], 1)
        while need > pos:
            n = min(need - pos, 16)
            out.append('s_nop %d' % (n - 1)); pos += n; nins += 1
        out.append(text)
        if I.kind == 'valu':
            for r in I.dst:
                if r[0] == 's': valu_sw[r] = pos
                else:
                    valu_w[r] = pos
                    mfma_w.pop(r, None)
                    if I.op.startswith(TRANS): trans_w[r] = pos
                    else: trans_w.pop(r, None)
        elif I.kind == 'mfma':
            for r in I.dst:
                mfma_w[r] = (pos, I.passes, tuple(I.dst)); valu_w.pop(r, None); trans_w.pop(r, None)
            for r in I.srcc: mfma_c[r] = (pos, I.passes)
        else:
            for r in I.dst:
                valu_w.pop(r, None); trans_w.pop(r, None); mfma_w.pop(r, None); valu_sw.pop(r, None)
                if r == ('s', 'm0'): salu_m0[0] = pos
        if I.wide_store:
            for r in I.data: store_d[r] = pos
        if I.op == 's_nop':
            pos += int(I.text.split()[1], 0) + 1
        else:
            pos += 1
    return out

class Asm:
    def __init__(self):
        self.L = []
        self.vm_n = 0; self.vm_done = -1
        self.lg_n = 0; self.lg_done = -1
    def __call__(self, text):
        for t in text.split('\n'):
            t = t.strip()
            if not t: continue
            self.L.append(t)
    def vm(self, text):
        self(text); self.vm_n += 1; return self.vm_n - 1
    def ds(self, text):
        self(text); self.lg_n += 1; return self.lg_n - 1
    def wait(self, vm=None, lg=None):
        parts = []
        if vm is not None and vm > self.vm_done:
            n = self.vm_n - 1 - vm
            if n <= 63:
                parts.append('vmcnt(%d)' % n); self.vm_done = vm
            else:
                parts.append('vmcnt(63)'); self.vm_done = max(self.vm_done, self.vm_n - 1 - 63)
                assert False, "vmcnt overflow"
        if lg is not None and lg > self.lg_done:
            n = min(self.lg_n - 1 - lg, 15)
            parts.append('lgkmcnt(%d)' % n); self.lg_done = self.lg_n - 1 - n
        if parts: self('s_waitcnt ' + ' '.join(parts))
    def wait_all(self, vm=True, lg=True):
        parts = []
        if vm: parts.append('vmcnt(0)'); self.vm_done = self.vm_n - 1
        if lg: parts.append('lgkmcnt(0)'); self.lg_done = self.lg_n - 1
        self('s_waitcnt ' + ' '.join(parts))
    def finish(self):
        return hazard_pass(self.L)

def vr(a, n=1, k='v'):
    return '%s%d' % (k, a) if n == 1 else '%s[%d:%d]' % (k, a, a + n - 1)
def ar(a, n=1): return vr(a, n, 'a')
def sr(a, n=1): return vr(a, n, 's')
```

```python
import sys, struct
sys.path.insert(0, "work")
from asmlib import *

WS_H, SZ_H = 0, 32*28*12288
WS_BT, SZ_BT = 0x00B00000, 7*4*7*12288
WS_AGG, SZ_AGG = 0x00E00000, 28*8192
WS_STAT, SZ_STAT = 0x00E40000, 2048*8
WS_EPOCH = 0x00E80000
WS_STAMP = 0x00F00000
LOG2E = 1.4426950408889634
INV2PI = 0.15915494309189535
def f2u(x): return '0x%08x' % struct.unpack('<I', struct.pack('<f', x))[0]

DPP_X1 = 'quad_perm:[1,0,3,2] row_mask:0xf bank_mask:0xf'
DPP_X2 = 'quad_perm:[2,3,0,1] row_mask:0xf bank_mask:0xf'
DPP_HM = 'row_half_mirror row_mask:0xf bank_mask:0xf'
MFMA = 'v_mfma_f32_32x32x16_bf16'

S_X, S_LRE, S_LIM, S_BRE, S_BIM, S_CRE, S_CIM, S_LDT = 16, 18, 20, 22, 24, 26, 28, 30
S_DSK, S_BX, S_W1, S_W2, S_OUT, S_DBG, S_WS = 32, 34, 36, 38, 40, 42, 44

def load_args(A):
    A('s_load_dwordx16 s[16:31], s[0:1], 0')
    A('s_load_dwordx8 s[32:39], s[0:1], 64')
    A('s_load_dwordx4 s[40:43], s[0:1], 96')
    A('s_load_dwordx2 s[44:45], s[0:1], 112')

def srd(A, d, base, size, off=0):
    if off == 0:
        A('s_mov_b32 s%d, s%d' % (d, base)); A('s_mov_b32 s%d, s%d' % (d+1, base+1))
    elif off > 0:
        A('s_add_u32 s%d, s%d, 0x%x' % (d, base, off)); A('s_addc_u32 s%d, s%d, 0' % (d+1, base+1))
    else:
        A('s_sub_u32 s%d, s%d, 0x%x' % (d, base, -off)); A('s_subb_u32 s%d, s%d, 0' % (d+1, base+1))
    A('s_mov_b32 s%d, 0x%x' % (d+2, size)); A('s_mov_b32 s%d, 0x00020000' % (d+3))

def bf16r(A, d, s):
    A('v_cvt_pk_bf16_f32 v%d, v%d, v%d' % (d, s, s))
    A('v_and_b32 v%d, 0xffff0000, v%d' % (d, d))

class Stamps:
    def __init__(self, A, on, base=72):
        self.A, self.on, self.n, self.base = A, on, 0, base
    def __call__(self):
        if self.on:
            self.A('s_memtime s[%d:%d]' % (self.base + 2*self.n, self.base + 2*self.n + 1)); self.n += 1
            assert self.n <= 13
    def dump(self, sW, kern):
        if not self.on: return
        A = self.A
        A('s_waitcnt lgkmcnt(0)')
        A('s_lshl_b32 s3, s2, 2'); A('s_add_u32 s3, s3, s%d' % sW)
        A('s_lshl_b32 s3, s3, 6')
        A('s_add_u32 s3, s3, 0x%x' % (WS_STAMP + kern*0x20000))
        A('v_mov_b32 v1, s3')
        for i in range(self.n):
            A('v_mov_b32 v2, s%d' % (self.base + 2*i))
            A('global_store_dword v1, v2, s[44:45] offset:%d' % (4*i))

def decode_ids(A, sW, sR, sS, sT0, sT1, sT2, lbl_other):
    A('v_lshrrev_b32 v1, 6, v0')
    A('v_and_b32 v0, 63, v0')
    A('s_lshr_b32 s%d, s2, 3' % sT0)
    A('v_readfirstlane_b32 s%d, v1' % sW)
    A('s_and_b32 s%d, s2, 7' % sT1)
    A('s_cmp_ge_u32 s%d, 28' % sT0)
    A('s_cbranch_scc1 %s' % lbl_other)
    A('s_mul_i32 s%d, s%d, 37' % (sT2, sT0))
    A('s_lshr_b32 s%d, s%d, 8' % (sT2, sT2))
    A('s_mul_i32 s%d, s%d, 7' % (sS, sT2))
    A('s_sub_u32 s%d, s%d, s%d' % (sS, sT0, sS))
    A('s_lshl_b32 s%d, s%d, 2' % (sR, sT1))
    A('s_add_u32 s%d, s%d, s%d' % (sR, sR, sT2))

def lam_base(A, vLre, vLim, vLdt):
    for v in (vLre, vLim, vLdt): A('v_lshlrev_b32 v%d, 16, v%d' % (v, v))
    A('v_mul_f32 v%d, %s, v%d' % (vLdt, f2u(LOG2E), vLdt))
    A('v_exp_f32 v%d, v%d' % (vLdt, vLdt))
    bf16r(A, vLdt, vLdt)

def lam_pow(A, n, vA, vP, dr, di, t):
    if n == 1:
        A('v_exp_f32 v%d, v%d' % (t, vA)); A('v_fract_f32 v%d, v%d' % (di, vP))
    else:
        A('v_mul_f32 v%d, %s, v%d' % (t, f2u(float(n)), vA)); A('v_mul_f32 v%d, %s, v%d' % (di, f2u(float(n)), vP))
        A('v_exp_f32 v%d, v%d' % (t, t)); A('v_fract_f32 v%d, v%d' % (di, di))
    A('v_cos_f32 v%d, v%d' % (dr, di)); A('v_sin_f32 v%d, v%d' % (di, di))
    A('v_mul_f32 v%d, v%d, v%d' % (dr, dr, t)); A('v_mul_f32 v%d, v%d, v%d' % (di, di, t))

def gen_p1(stamps=False, st_flags=''):
    A = Asm(); ST = Stamps(A, stamps)
    sW, sR, sS, sU, sRing, sTag, sEp = 4, 5, 6, 7, 8, 9, 10
    sT0, sT1, sT2, sT3 = 11, 12, 13, 14
    R_X, R_BRE, R_BIM, R_W1, R_H, R_AGG = 48, 52, 56, 60, 64, 48
    sHo = [46, 47, 15]
    sSoS, sSoW = 68, 69
    A('p1_kernel:')
    ST()
    A('s_cmp_ge_u32 s2, 256')
    A('s_cbranch_scc1 L1_done')
    load_args(A)
    decode_ids(A, sW, sR, sS, sT0, sT1, sT2, 'L1_pretile')
    A('s_lshl_b32 s%d, s%d, 2' % (sU, sS))
    A('s_add_u32 s%d, s%d, s%d' % (sU, sU, sW))
    A('v_lshrrev_b32 v34, 3, v0')
    A('v_and_b32 v35, 7, v0')
    A('v_mul_u32_u24 v2, 896, v34')
    A('v_lshl_add_u32 v2, v35, 4, v2')
    A('s_lshl_b32 s%d, s%d, 2' % (sT0, sR))
    A('s_add_u32 s%d, s%d, s%d' % (sT0, sT0, sW))
    A('s_mul_i32 s%d, s%d, %d' % (sT0, sT0, 16*896))
    A('s_add_u32 s%d, s%d, %d' % (sT1, sT0, 8*896))
    A('s_waitcnt lgkmcnt(0)')
    srd(A, R_X, S_X, 2048*896)
    xt = []
    for rs in range(2):
        for jj in range(7):
            r0 = 48 + 28*rs + 4*jj
            xt.append(A.vm('buffer_load_dwordx4 v[%d:%d], v2, s[%d:%d], s%d offen offset:%d' % (r0, r0+3, R_X, R_X+3, sT0+rs, jj*128)))
    A('s_add_u32 s70, s44, 0x%x' % WS_EPOCH); A('s_addc_u32 s71, s45, 0')
    A('s_load_dword s%d, s[70:71], 0' % sEp)
    A('v_and_b32 v36, 31, v0')
    A('v_and_b32 v37, 30, v0')
    A('s_lshl_b32 s3, s%d, 5' % sU)
    A('v_add_u32 v37, s3, v37')
    tl = [A.vm('global_load_ushort v%d, v37, s[%d:%d]' % (41+i, b, b+1)) for i, b in enumerate((S_LRE, S_LIM, S_LDT))]
    srd(A, R_BRE, S_BRE, 448*896 + 4096, -4096)
    srd(A, R_BIM, S_BIM, 448*896 + 4096, -4096)
    srd(A, R_W1, S_W1, 448*3584)
    A('v_and_b32 v38, 6, v34')
    A('v_xor_b32 v38, v38, v35')
    A('v_xor_b32 v39, 1, v38')
    A('v_mul_u32_u24 v1, 896, v34')
    A('v_lshl_add_u32 v38, v38, 4, v1')
    A('v_lshl_add_u32 v39, v39, 4, v1')
    for k in range(4):
        ri, ph = k >> 1, k & 1
        A('v_add_u32 v%d, %d, v%d' % (5+k, ph*8*896 + 4096 - 1024*k, 38+ri))
    A('v_lshlrev_b32 v38, 1, v34')
    A('v_and_b32 v38, 4, v38')
    A('v_xor_b32 v38, v38, v35')
    A('v_mul_u32_u24 v1, 3584, v34')
    A('v_lshl_add_u32 v38, v38, 4, v1')
    for k in range(4):
        A('v_add_u32 v%d, %d, v38' % (9+k, k*(8*3584 - 1024)))
    RING0, RINGB, NG = 59392, 24576, 6
    A('s_mul_i32 s%d, s%d, %d' % (sRing, sW, RINGB))
    A('s_add_u32 s%d, s%d, %d' % (sRing, sRing, RING0))
    A('s_mul_i32 s%d, s%d, %d' % (sSoS, sU, 16*896))
    A('s_lshl_b32 s%d, s%d, 7' % (sSoW, sU))
    gtok = {}
    def issue_group(g):
        if g >= 21: return
        A('s_add_u32 m0, s%d, %d' % (sRing, (g % NG)*4096))
        for k in range(4):
            if g < 7:
                R = R_BRE if k < 2 else R_BIM
                t = A.vm('buffer_load_dwordx4 v%d, s[%d:%d], s%d offen offset:%d lds' % (5+k, R, R+3, sSoS, 1024*k))
            else:
                t = A.vm('buffer_load_dwordx4 v%d, s[%d:%d], s%d offen offset:%d lds' % (9+k, R_W1, R_W1+3, sSoW, 1024*k))
        gtok[g] = t
        if g < 7: A('s_add_u32 s%d, s%d, 128' % (sSoS, sSoS))
        else: A('s_add_u32 s%d, s%d, %d' % (sSoW, sSoW, 32*3584))
    for g in range(NG): issue_group(g)
    A('v_lshrrev_b32 v38, 5, v0')
    A('v_and_b32 v39, 3, v34')
    A('v_lshl_add_u32 v39, v38, 3, v39')
    A('s_and_b32 s3, s%d, 1' % sW); A('s_lshl_b32 s3, s3, 5')
    A('s_lshr_b32 s%d, s%d, 1' % (sT0, sW)); A('s_lshl_b32 s%d, s%d, 2' % (sT0, sT0)); A('s_add_u32 s3, s3, s%d' % sT0)
    A('v_add_u32 v39, s3, v39')
    A('v_mul_u32_u24 v3, 1040, v35')
    A('v_lshl_add_u32 v3, v39, 4, v3')
    A('v_lshlrev_b32 v44, 2, v39')
    A('v_mul_u32_u24 v4, 1040, v38')
    A('v_lshl_add_u32 v4, v36, 4, v4')
    A('v_and_b32 v45, 1, v0')
    A('v_bfe_u32 v46, v0, 1, 3')
    A('v_bfe_u32 v47, v0, 4, 1')
    A('v_lshl_add_u32 v47, v45, 1, v47')
    A('v_and_b32 v1, 6, v46')
    A('v_or_b32 v1, v1, v45')
    A('v_xor_b32 v1, v1, v38')
    A('v_lshlrev_b32 v1, 4, v1')
    A('v_lshl_add_u32 v1, v46, 7, v1')
    A('v_lshl_add_u32 v1, v47, 10, v1')
    A('v_add_u32 v13, s%d, v1' % sRing)
    for sp in range(1, 4): A('v_xor_b32 v%d, %d, v13' % (13+sp, 32*sp))
    A('v_bfe_u32 v46, v0, 2, 2')
    A('v_and_b32 v47, 3, v0')
    A('v_lshlrev_b32 v1, 3, v47')
    A('v_lshl_add_u32 v1, v46, 7, v1')
    A('v_lshrrev_b32 v46, 1, v46')
    A('v_lshl_add_u32 v1, v46, 6, v1')
    A('v_bfe_u32 v46, v0, 4, 1')
    A('v_lshl_add_u32 v1, v46, 5, v1')
    A('v_lshl_add_u32 v1, v38, 10, v1')
    A('v_add_u32 v17, s%d, v1' % sRing)
    A('v_xor_b32 v18, 64, v17')
    A('v_lshlrev_b32 v19, 4, v0')
    ST()
    U0 = 104
    for rs in range(2):
        for jj in range(7):
            A.wait(vm=xt[7*rs+jj])
            for e in range(4):
                src = 48 + 28*rs + 4*jj + e; d = U0 + 56*rs + 8*jj + 2*e
                A('v_lshlrev_b32 v%d, 16, v%d' % (d, src))
                A('v_and_b32 v%d, 0xffff0000, v%d' % (d+1, src))
                acc = 216 + 4*rs + 2*(e & 1)
                if jj == 0 and e < 2: A('v_mov_b64 v[%d:%d], v[%d:%d]' % (acc, acc+1, d, d+1))
                else: A('v_pk_add_f32 v[%d:%d], v[%d:%d], v[%d:%d]' % (acc, acc+1, acc, acc+1, d, d+1))
    ST()
    def reduce8(regs):
        for dpp in (DPP_X1, DPP_X2, DPP_HM):
            for r in regs: A('v_add_f32_dpp v%d, v%d, v%d %s' % (r, r, r, dpp))
    for rs in range(2):
        a = 216 + 4*rs
        A('v_pk_add_f32 v[%d:%d], v[%d:%d], v[%d:%d]' % (a, a+1, a, a+1, a+2, a+3))
        A('v_add_f32 v%d, v%d, v%d' % (a, a, a+1))
    reduce8([216, 220])
    for rs in range(2):
        a = 216 + 4*rs
        A('v_mul_f32 v%d, %s, v%d' % (a+2, f2u(1.0/448), a))
        bf16r(A, a, a+2)
        A('v_sub_f32 v%d, v%d, v%d' % (a+2, a+2, a))
    for rs in range(2):
        a = 216 + 4*rs; q = 224 + 4*rs
        for jj in range(7):
            for e in range(4):
                d = U0 + 56*rs + 8*jj + 2*e; dst = 48 + 28*rs + 4*jj + e
                A('v_pk_add_f32 v[%d:%d], v[%d:%d], v[%d:%d] op_sel_hi:[1,0] neg_lo:[0,1] neg_hi:[0,1]' % (d, d+1, d, d+1, a, a+1))
                A('v_cvt_pk_bf16_f32 v%d, v%d, v%d' % (dst, d, d+1))
                qq = q + 2*(e & 1)
                if jj == 0 and e < 2: A('v_pk_mul_f32 v[%d:%d], v[%d:%d], v[%d:%d]' % (qq, qq+1, d, d+1, d, d+1))
                else: A('v_pk_fma_f32 v[%d:%d], v[%d:%d], v[%d:%d], v[%d:%d]' % (qq, qq+1, d, d+1, d, d+1, qq, qq+1))
            r0 = 48 + 28*rs + 4*jj
            A.ds('ds_write_b128 v3, v[%d:%d] offset:%d' % (r0, r0+3, jj*8320 + rs*256))
    for rs in range(2):
        q = 224 + 4*rs
        A('v_pk_add_f32 v[%d:%d], v[%d:%d], v[%d:%d]' % (q, q+1, q, q+1, q+2, q+3))
        A('v_add_f32 v%d, v%d, v%d' % (q, q, q+1))
    reduce8([224, 228])
    STAT_S, STAT_R = 58240, 58240 + 256
    A('s_lshl_b32 s3, s%d, 6' % sW)
    A('v_lshl_add_u32 v45, v34, 2, s3')
    A('s_lshl_b32 s3, s%d, 9' % sR)
    A('s_add_u32 s3, s3, 0x%x' % WS_STAT)
    A('v_lshl_add_u32 v46, v45, 1, s3')
    for rs in range(2):
        a = 216 + 4*rs; q = 224 + 4*rs
        A('v_mul_f32 v%d, v%d, v%d' % (a+2, a+2, a+2))
        A('v_mul_f32 v%d, %s, v%d' % (q, f2u(1.0/448), q))
        A('v_sub_f32 v%d, v%d, v%d' % (q, q, a+2))
        A('v_max_f32 v%d, 0, v%d' % (q, q))
        bf16r(A, q, q)
        A('v_add_f32 v%d, %s, v%d' % (q, f2u(1e-5), q))
        bf16r(A, q, q)
        A('v_sqrt_f32 v%d, v%d' % (q, q))
        bf16r(A, q, q)
        A('v_rcp_f32 v%d, v%d' % (a+1, q))
        A.ds('ds_write_b32 v44, v%d offset:%d' % (q, STAT_S + rs*64))
        A.ds('ds_write_b32 v45, v%d offset:%d' % (a+1, STAT_R + rs*32))
        A.vm('global_store_dwordx2 v46, v[%d:%d], s[44:45] offset:%d' % (a, a+1, rs*64))
    ST()
    A.wait_all(vm=False)
    A('s_barrier')
    A('s_add_u32 s%d, s%d, 2' % (sEp, sEp))
    A('s_or_b32 s%d, s%d, 1' % (sTag, sEp))
    A('v_mov_b32 v40, s%d' % sTag)
    A('s_cmp_lg_u32 s%d, 0' % sW)
    A('s_cbranch_scc1 L1_nocount')
    A('s_mov_b64 exec, 1')
    A('v_mov_b32 v254, 1'); A('v_mov_b32 v255, 0')
    A('global_atomic_add v254, v255, v254, s[%d:%d] sc0 sc1' % (S_DBG, S_DBG+1))
    A('s_mov_b64 exec, -1')
    A('L1_nocount:')
    xf = {}
    for s in range(28):
        for i in range(2):
            a0 = 8*s + 4*i
            xf[(s, i)] = A.ds('ds_read_b128 a[%d:%d], v4 offset:%d' % (a0, a0+3, s*2080 + i*512))
    A.wait(vm=tl[2])
    lam_base(A, 41, 42, 43)
    A('v_mul_f32 v41, v41, v43'); A('v_mul_f32 v42, v42, v43')
    A('v_mul_f32 v41, %s, v41' % f2u(LOG2E)); A('v_mul_f32 v42, %s, v42' % f2u(INV2PI))
    A('v_and_b32 v45, 1, v0'); A('v_lshlrev_b32 v45, 31, v45'); A('v_xor_b32 v45, 0x80000000, v45')
    PW = {1: 20, 16: 22, 32: 24, 64: 26, 128: 28}
    for n, d in PW.items():
        lam_pow(A, n, 41, 42, d, d+1, 43)
        A('v_xor_b32 v%d, v45, v%d' % (d+1, d+1))
    A('v_lshlrev_b32 v46, 2, v36')
    tst = [A.ds('ds_read_b32 v%d, v46 offset:%d' % (30+i, STAT_S + 128*i)) for i in range(2)]
    A('v_lshlrev_b32 v47, 7, v38')
    for k in range(8): trt = A.ds('ds_read_b128 v[%d:%d], v47 offset:%d' % (176+4*k, 179+4*k, STAT_R + 16*k))
    ST()
    ACS, ACF, WB = 48, 80, 144
    def s_read(s):
        g = s >> 2
        if (s & 3) == 0: A.wait(vm=gtok[g])
        b = WB + 4*(s % 4)
        return A.ds('ds_read_b128 v[%d:%d], v%d offset:%d' % (b, b+3, 13 + (s & 3), (g % NG)*4096))
    rt = {}
    for s in range(2): rt[s] = s_read(s)
    for s in range(28):
        if s + 2 < 28: rt[s+2] = s_read(s+2)
        A.wait(lg=max(rt[s], xf[(s, 1)]))
        b = WB + 4*(s % 4)
        for i in range(2):
            c = 'v[%d:%d]' % (ACS+16*i, ACS+16*i+15)
            A('%s %s, a[%d:%d], v[%d:%d], %s' % (MFMA, c, 8*s+4*i, 8*s+4*i+3, b, b+3, c if s else '0'))
        if (s & 3) == 3: issue_group((s >> 2) + NG)
    ST()
    def f_read(s):
        g = 7 + (s >> 1)
        if (s & 1) == 0: A.wait(vm=gtok[g])
        base = (g % NG)*4096 + (s & 1)*2048
        for q in range(2):
            b = WB + 8*(s % 4) + 4*q
            A.ds('ds_read_b64_tr_b16 v[%d:%d], v%d offset:%d' % (b, b+1, 17+q, base))
            t = A.ds('ds_read_b64_tr_b16 v[%d:%d], v%d offset:%d' % (b+2, b+3, 17+q, base+512))
        return t
    for k in range(32): A('v_mul_f32 v%d, v%d, v%d' % (ACS+k, ACS+k, 176+k))
    TA = 208
    def cmul_add(d, mu, v, add):
        A('v_fma_f32 v%d, v%d, v%d, v%d' % (d, mu, v, add))
        A('v_fmac_f32_dpp v%d, v%d, v%d %s' % (d, v, mu+1, DPP_X1))
    cur = [ACS, ACS+16]
    for j in range(1, 16):
        nd = [TA + 2*i + (j & 1) for i in range(2)]
        for i in range(2): A('v_fma_f32 v%d, v20, v%d, v%d' % (nd[i], cur[i], ACS+16*i+j))
        for i in range(2): A('v_fmac_f32_dpp v%d, v%d, v21 %s' % (nd[i], cur[i], DPP_X1))
        cur = nd
    a0, a1 = cur
    A('v_mov_b32 v34, v%d' % a0)
    cmul_add(35, 22, 34, a1)
    A('v_mov_b32 v39, v35')
    A('v_permlane32_swap_b32 v35, v39')
    cmul_add(44, 24, 35, 39)
    A('v_mov_b32 v45, v40')
    srd(A, R_AGG, S_WS, 8192, WS_AGG)
    A('s_lshl_b32 s3, s%d, 13' % sU)
    A('s_add_u32 s%d, s%d, s3' % (R_AGG, R_AGG)); A('s_addc_u32 s%d, s%d, 0' % (R_AGG+1, R_AGG+1))
    A('s_lshl_b32 s3, s%d, 8' % sR)
    A('v_lshlrev_b32 v46, 3, v36')
    A.vm('buffer_store_dwordx2 v[44:45], v46, s[%d:%d], s3 offen sc1' % (R_AGG, R_AGG+3))
    ST()
    rt = {}
    for s in range(2): rt[s] = f_read(s)
    for s in range(28):
        if s + 2 < 28: rt[s+2] = f_read(s+2)
        A.wait(lg=rt[s])
        for q in range(2):
            b = WB + 8*(s % 4) + 4*q
            for i in range(2):
                c0 = ACF + 32*q + 16*i
                c = 'v[%d:%d]' % (c0, c0+15)
                A('%s %s, v[%d:%d], a[%d:%d], %s' % (MFMA, c, b, b+3, 8*s+4*i, 8*s+4*i+3, c if s else '0'))
        if (s & 1) == 1: issue_group(7 + (s >> 1) + NG)
    ST()
    srd(A, R_H, S_WS, SZ_H, WS_H) if WS_H else srd(A, R_H, S_WS, SZ_H)
    A('s_mul_i32 s3, s%d, 28' % sR); A('s_add_u32 s3, s3, s%d' % sU)
    A('s_mul_i32 s%d, s3, 12288' % sHo[0])
    A('s_add_u32 s%d, s%d, 4096' % (sHo[1], sHo[0])); A('s_add_u32 s%d, s%d, 8192' % (sHo[2], sHo[0]))
    for i in range(2):
        A('v_rcp_f32 v%d, v%d' % (32+i, 30+i))
    for i in range(2):
        A('v_mul_f32 v%d, %s, v%d' % (32+i, f2u(-LOG2E), 32+i))
    E = 144
    for q in range(2):
        for i in range(2):
            c0 = ACF + 32*q + 16*i
            for a in range(2):
                c = c0 + 8*a
                o = 160 + 4*((2*i + a) % 4)
                for e in range(8): A('v_mul_f32 v%d, v%d, v%d' % (E+e, c+e, 32+i))
                for e in range(8): A('v_exp_f32 v%d, v%d' % (E+e, E+e))
                for e in range(8): A('v_fma_f32 v%d, v%d, v%d, v%d' % (E+e, E+e, 30+i, 30+i))
                for e in range(8): A('v_rcp_f32 v%d, v%d' % (E+e, E+e))
                for e in range(8): A('v_mul_f32 v%d, v%d, v%d' % (E+e, E+e, c+e))
                for e in range(4): A('v_cvt_pk_bf16_f32 v%d, v%d, v%d' % (o+e, E+2*e, E+2*e+1))
                A.vm('buffer_store_dwordx4 v[%d:%d], v19, s[%d:%d], s%d offen offset:%d %s' % (o, o+3, R_H, R_H+3, sHo[q], a*2048 + i*1024, st_flags))
    ST()
    LB = 208
    A('v_mov_b32 v44, 0')
    A('s_cmp_eq_u32 s%d, 0' % sR)
    A('s_cbranch_scc1 L1_lb_done')
    A('s_sub_u32 s3, s%d, 1' % sR); A('s_lshl_b32 s3, s3, 8')
    A('v_lshlrev_b32 v47, 8, v38')
    A('v_sub_u32 v47, v46, v47')
    A('v_add_u32 v176, s3, v47')
    for m in range(1, 16): A('v_subrev_u32 v%d, %d, v176' % (176+m, 512*m))
    A('s_lshl_b32 s%d, s%d, 5' % (sT1, sR))
    A('s_mov_b32 s%d, 0' % sT2)
    A('L1_lb_poll:')
    for m in range(16):
        A('buffer_load_dwordx2 v[%d:%d], v%d, s[%d:%d], 0 offen sc1' % (LB+2*m, LB+2*m+1, 176+m, R_AGG, R_AGG+3))
    A('s_waitcnt vmcnt(0)')
    A('s_mov_b32 s%d, 0' % sT0)
    for m in range(16):
        A('v_cmp_eq_u32 vcc, v%d, v40' % (LB+2*m+1))
        A('s_bcnt1_i32_b64 s3, vcc')
        A('s_add_u32 s%d, s%d, s3' % (sT0, sT0))
    A('s_cmp_eq_u32 s%d, s%d' % (sT0, sT1))
    A('s_cbranch_scc1 L1_lb_ok')
    A('s_add_u32 s%d, s%d, 1' % (sT2, sT2))
    A('s_cmp_lt_u32 s%d, 0x40000' % sT2)
    A('s_cbranch_scc1 L1_lb_poll')
    A('L1_lb_ok:')
    cur = LB + 30
    for m in range(14, -1, -1):
        nd = 41 + (m & 1)
        A('v_fma_f32 v%d, v28, v%d, v%d' % (nd, cur, LB+2*m))
        A('v_fmac_f32_dpp v%d, v%d, v29 %s' % (nd, cur, DPP_X1))
        cur = nd
    A('v_mov_b32 v43, v%d' % cur)
    A('v_permlane32_swap_b32 v%d, v43' % cur)
    cmul_add(44, 26, 43, cur)
    A('L1_lb_done:')
    A.vm_done = A.vm_done
    ST()
    cmul_add(41, 24, 44, 35)
    A('v_cmp_eq_u32 vcc, 0, v38')
    A('v_cndmask_b32 v41, v41, v44, vcc')
    cmul_add(42, 22, 41, 34)
    cur = [41, 42]
    for j in range(16):
        nd = [ACS + 16*i + j for i in range(2)]
        for i in range(2): A('v_fma_f32 v%d, v20, v%d, v%d' % (nd[i], cur[i], nd[i]))
        for i in range(2): A('v_fmac_f32_dpp v%d, v%d, v21 %s' % (nd[i], cur[i], DPP_X1))
        cur = nd
    for k in range(16): A('v_cvt_pk_bf16_f32 v%d, v%d, v%d' % (144+k, ACS+2*k, ACS+2*k+1))
    A('v_mul_u32_u24 v46, 144, v36')
    A('v_lshl_add_u32 v46, v38, 6, v46')
    A('v_add_u32 v46, s%d, v46' % sRing)
    for k in range(4): tw = A.ds('ds_write_b128 v46, v[%d:%d] offset:%d' % (144+4*k, 147+4*k, 16*k))
    A('v_bfe_u32 v47, v0, 2, 2')
    A('v_lshl_add_u32 v47, v38, 3, v47')
    A('v_mul_u32_u24 v47, 144, v47')
    A('v_and_b32 v1, 1, v0'); A('v_lshl_add_u32 v47, v1, 6, v47')
    A('v_bfe_u32 v1, v0, 1, 1'); A('v_lshl_add_u32 v47, v1, 3, v47')
    A('v_bfe_u32 v1, v0, 4, 1'); A('v_lshl_add_u32 v47, v1, 4, v47')
    A('v_add_u32 v47, s%d, v47' % sRing)
    A.wait(lg=tw)
    tr = {}
    for a in range(2):
        for i in range(2):
            o = 160 + 8*a + 4*i
            A.ds('ds_read_b64_tr_b16 v[%d:%d], v47 offset:%d' % (o, o+1, a*16*144 + 32*i))
            tr[(a, i)] = A.ds('ds_read_b64_tr_b16 v[%d:%d], v47 offset:%d' % (o+2, o+3, a*16*144 + 4*144 + 32*i))
    for a in range(2):
        for i in range(2):
            o = 160 + 8*a + 4*i
            A.wait(lg=tr[(a, i)])
            A.vm('buffer_store_dwordx4 v[%d:%d], v19, s[%d:%d], s%d offen offset:%d %s' % (o, o+3, R_H, R_H+3, sHo[2], a*2048 + i*1024, st_flags))
    ST()
    A('s_cmp_lg_u32 s%d, 0' % sW)
    A('s_cbranch_scc1 L1_fin')
    A('s_waitcnt vmcnt(0)')
    A('v_readfirstlane_b32 s3, v254')
    A('s_cmp_lg_u32 s3, 223')
    A('s_cbranch_scc1 L1_fin')
    A('v_mov_b32 v1, s%d' % sEp); A('v_mov_b32 v2, 0')
    A('global_store_dword v2, v1, s[70:71] sc1')
    A('L1_fin:')
    ST()
    ST.dump(sW, 0)
    A('s_endpgm')

    P = Asm()
    R_W2, R_CRE, R_CIM, R_BT = 48, 52, 56, 60
    sIt, sL, sRd = 5, 6, 7
    P('L1_pretile:')
    P('s_sub_u32 s%d, s%d, 28' % (sT0, sT0)); P('s_lshl_b32 s%d, s%d, 2' % (sT1, sT1)); P('s_add_u32 s%d, s%d, s%d' % (sT0, sT0, sT1))
    P('s_lshl_b32 s%d, s%d, 2' % (sT0, sT0)); P('s_add_u32 s%d, s%d, s%d' % (sIt, sT0, sW))
    P('s_mul_i32 s%d, s%d, 9216' % (sL, sW))
    P('v_lshrrev_b32 v34, 3, v0'); P('v_and_b32 v35, 7, v0'); P('v_lshrrev_b32 v38, 5, v0'); P('v_and_b32 v36, 31, v0')
    P('v_lshlrev_b32 v1, 1, v34'); P('v_and_b32 v1, 4, v1'); P('v_xor_b32 v1, v1, v35')
    P('v_mul_u32_u24 v2, 896, v34')
    P('v_lshl_add_u32 v1, v1, 4, v2')
    for k in range(4): P('v_add_u32 v%d, %d, v1' % (5+k, k*(8*896 - 1024)))
    P('v_lshrrev_b32 v1, 1, v34'); P('v_xor_b32 v1, v1, v35')
    P('v_xor_b32 v3, 4, v1')
    P('v_lshl_add_u32 v1, v1, 4, v2'); P('v_lshl_add_u32 v3, v3, 4, v2')
    for k in range(4): P('v_add_u32 v%d, %d, v%d' % (9+k, k*(8*896 - 1024), 3 if k & 1 else 1))
    P('v_bfe_u32 v46, v0, 2, 2'); P('v_and_b32 v47, 3, v0')
    P('v_lshlrev_b32 v1, 3, v47'); P('v_lshl_add_u32 v1, v46, 7, v1')
    P('v_lshrrev_b32 v46, 1, v46'); P('v_lshl_add_u32 v1, v46, 6, v1')
    P('v_bfe_u32 v46, v0, 4, 1'); P('v_lshl_add_u32 v1, v46, 5, v1')
    P('v_lshl_add_u32 v1, v38, 9, v1')
    P('v_add_u32 v17, s%d, v1' % sL); P('v_xor_b32 v18, 64, v17')
    P('v_bfe_u32 v1, v0, 1, 3'); P('v_lshlrev_b32 v1, 4, v1'); P('v_lshl_add_u32 v1, v36, 7, v1'); P('v_lshl_add_u32 v1, v38, 3, v1')
    P('v_add_u32 v20, s%d, v1' % sL)
    P('v_lshlrev_b32 v19, 4, v0')
    P('v_lshlrev_b32 v21, 3, v0'); P('v_add_u32 v21, s%d, v21' % sL)
    P('v_lshlrev_b32 v22, 5, v38'); P('v_add_u32 v22, s%d, v22' % sL)
    P('s_waitcnt lgkmcnt(0)')
    srd(P, R_W2, S_W2, 1792*896); srd(P, R_CRE, S_CRE, 448*896); srd(P, R_CIM, S_CIM, 448*896); srd(P, R_BT, S_WS, SZ_BT, WS_BT)
    P('L1_pt_loop:')
    P('s_cmp_ge_u32 s%d, 196' % sIt)
    P('s_cbranch_scc1 L1_pt_c')
    P('s_mul_i32 s%d, s%d, 9363' % (sT0, sIt)); P('s_lshr_b32 s%d, s%d, 16' % (sT0, sT0))
    P('s_mul_i32 s%d, s%d, 7' % (sT1, sT0)); P('s_sub_u32 s%d, s%d, s%d' % (sT1, sIt, sT1))
    P('s_mul_i32 s%d, s%d, %d' % (sT2, sT0, 64*896)); P('s_lshl_b32 s3, s%d, 7' % sT1); P('s_add_u32 s%d, s%d, s3' % (sT2, sT2))
    for hf in range(2):
        P('s_add_u32 m0, s%d, %d' % (sL, hf*4096))
        for k in range(4): P('buffer_load_dwordx4 v%d, s[%d:%d], s%d offen offset:%d lds' % (5+k, R_W2, R_W2+3, sT2, 1024*k))
        if hf == 0: P('s_add_u32 s%d, s%d, %d' % (sT2, sT2, 32*896))
    P('s_lshl_b32 s%d, s%d, 2' % (sT1, sT1)); P('s_and_b32 s3, s%d, 3' % sT0); P('s_add_u32 s%d, s%d, s3' % (sT1, sT1))
    P('s_mul_i32 s%d, s%d, 7' % (sT1, sT1)); P('s_lshr_b32 s3, s%d, 2' % sT0); P('s_add_u32 s%d, s%d, s3' % (sT1, sT1))
    P('s_mul_i32 s%d, s%d, 12288' % (sT1, sT1)); P('s_add_u32 s%d, s%d, 4096' % (sT2, sT1))
    P('s_waitcnt vmcnt(0)')
    for kp in range(4):
        for j in range(2):
            o = 48 + 8*kp + 4*j
            P('ds_read_b64_tr_b16 v[%d:%d], v%d offset:%d' % (o, o+1, 17+j, kp*2048))
            P('ds_read_b64_tr_b16 v[%d:%d], v%d offset:%d' % (o+2, o+3, 17+j, kp*2048 + 1024))
    P('s_waitcnt lgkmcnt(0)')
    for kp in range(4):
        for j in range(2):
            o = 48 + 8*kp + 4*j
            P('buffer_store_dwordx4 v[%d:%d], v19, s[%d:%d], s%d offen offset:%d %s' % (o, o+3, R_BT, R_BT+3, sT1 + (kp >> 1), (kp & 1)*2048 + j*1024, st_flags))
    P('s_branch L1_pt_next')
    P('L1_pt_c:')
    P('s_sub_u32 s3, s%d, 196' % sIt); P('s_and_b32 s%d, s3, 1' % sT3); P('s_lshr_b32 s3, s3, 1')
    P('s_mul_i32 s%d, s3, 37' % sT0); P('s_lshr_b32 s%d, s%d, 8' % (sT0, sT0))
    P('s_mul_i32 s%d, s%d, 7' % (sT1, sT0)); P('s_sub_u32 s%d, s3, s%d' % (sT1, sT1))
    P('s_lshl_b32 s3, s%d, 1' % sT0); P('s_add_u32 s3, s3, s%d' % sT3); P('s_mul_i32 s%d, s3, %d' % (sT2, 32*896))
    P('s_lshl_b32 s3, s%d, 7' % sT1); P('s_add_u32 s%d, s%d, s3' % (sT2, sT2))
    P('v_lshlrev_b32 v37, 1, v0'); P('v_add_u32 v37, s3, v37')
    for i, b in enumerate((S_LRE, S_LIM, S_LDT)): P('global_load_ushort v%d, v37, s[%d:%d]' % (41+i, b, b+1))
    for hf, R in enumerate((R_CRE, R_CIM)):
        P('s_add_u32 m0, s%d, %d' % (sL, hf*4096))
        for k in range(4): P('buffer_load_dwordx4 v%d, s[%d:%d], s%d offen offset:%d lds' % (9+k, R, R+3, sT2, 1024*k))
    P('s_mul_i32 s%d, s%d, 28' % (sT0, sT0)); P('s_add_u32 s%d, s%d, s%d' % (sT0, sT0, sT1)); P('s_mul_i32 s%d, s%d, 12288' % (sT0, sT0))
    P('s_lshl_b32 s3, s%d, 10' % sT3); P('s_add_u32 s%d, s%d, s3' % (sT0, sT0)); P('s_add_u32 s%d, s%d, 8192' % (sT0, sT0))
    P('s_waitcnt vmcnt(8)')
    lam_base(P, 41, 42, 43)
    P('v_mul_f32 v44, v41, v43'); P('v_mul_f32 v45, v42, v43')
    P('v_mul_f32 v44, %s, v44' % f2u(LOG2E)); P('v_mul_f32 v45, %s, v45' % f2u(INV2PI))
    lam_pow(P, 1, 44, 45, 46, 47, 43)
    P('v_add_f32 v46, -1.0, v46')
    P('v_mul_f32 v43, v41, v41'); P('v_fmac_f32 v43, v42, v42'); P('v_rcp_f32 v43, v43')
    P('v_mul_f32 v44, v46, v41'); P('v_fmac_f32 v44, v47, v42')
    P('v_mul_f32 v45, v47, v41'); P('v_fma_f32 v45, -v46, v42, v45')
    P('v_add_f32 v43, v43, v43')
    P('v_mul_f32 v44, v44, v43'); P('v_mul_f32 v45, v45, v43')
    P('ds_write_b64 v21, v[44:45] offset:8192')
    P('s_waitcnt vmcnt(0) lgkmcnt(0)')
    for w in range(4):
        for a in range(2):
            un = 2*w + a
            P('v_xor_b32 v1, %d, v20' % (16*un))
            P('ds_read_b64 v[48:49], v1'); P('ds_read_b64 v[50:51], v1 offset:4096')
            P('ds_read_b128 v[52:55], v22 offset:%d' % (8192 + un*64)); P('ds_read_b128 v[56:59], v22 offset:%d' % (8192 + un*64 + 16))
            P('s_waitcnt lgkmcnt(0)')
            o = 64 + 4*(un & 1)
            for e in range(4):
                sre, sim = 48 + (e >> 1), 50 + (e >> 1)
                if e & 1:
                    P('v_and_b32 v60, 0xffff0000, v%d' % sre); P('v_and_b32 v61, 0xffff0000, v%d' % sim)
                else:
                    P('v_lshlrev_b32 v60, 16, v%d' % sre); P('v_lshlrev_b32 v61, 16, v%d' % sim)
                cr, ci = 52 + 2*e, 53 + 2*e
                P('v_mul_f32 v62, v%d, v60' % cr); P('v_fma_f32 v62, -v%d, v61, v62' % ci)
                P('v_mul_f32 v63, v%d, v61' % cr); P('v_fmac_f32 v63, v%d, v60' % ci)
                P('v_cvt_pk_bf16_f32 v%d, v62, -v63' % (o+e))
            P('buffer_store_dwordx4 v[%d:%d], v19, s[%d:%d], s%d offen offset:%d %s' % (o, o+3, R_BT, R_BT+3, sT0, a*2048, st_flags))
        if w < 3: P('s_add_u32 s%d, s%d, %d' % (sT0, sT0, 7*12288))
    P('L1_pt_next:')
    P('s_add_u32 s%d, s%d, 128' % (sIt, sIt))
    P('s_cmp_lt_u32 s%d, 294' % sIt)
    P('s_cbranch_scc1 L1_pt_loop')
    P('L1_done:')
    P('s_endpgm')
    return A.finish() + P.finish()

def gen_p2(stamps=False, ld_flags=''):
    A = Asm(); ST = Stamps(A, stamps)
    sW, sR, sC = 4, 5, 6
    sT0, sT1, sT2, sT3 = 11, 12, 13, 14
    R_H, R_BT, R_X, R_OUT = 48, 52, 56, 60
    sA, sB = 7, 8
    A('p2_kernel:')
    ST()
    A('s_cmp_ge_u32 s2, 224')
    A('s_cbranch_scc1 L2_done')
    load_args(A)
    decode_ids(A, sW, sR, sC, sT0, sT1, sT2, 'L2_done')
    A('v_lshlrev_b32 v2, 4, v0')
    A('s_mul_i32 s%d, s%d, 28' % (sA, sR)); A('s_add_u32 s%d, s%d, s%d' % (sA, sA, sW)); A('s_mul_i32 s%d, s%d, 12288' % (sA, sA))
    A('s_lshl_b32 s%d, s%d, 2' % (sB, sC)); A('s_add_u32 s%d, s%d, s%d' % (sB, sB, sW)); A('s_mul_i32 s%d, s%d, %d' % (sB, sB, 7*12288))
    A('s_waitcnt lgkmcnt(0)')
    srd(A, R_H, S_WS, SZ_H); srd(A, R_BT, S_WS, SZ_BT, WS_BT)
    DEPTH = 8
    FB = 96
    tok = {}
    def issue(st):
        if st >= 42: return
        kp = st % 6
        b = FB + 16*(st % DEPTH)
        for i in range(2):
            A.vm('buffer_load_dwordx4 v[%d:%d], v2, s[%d:%d], s%d offen offset:%d %s' % (b+4*i, b+4*i+3, R_H, R_H+3, sA, (kp & 1)*2048 + i*1024, ld_flags))
        for j in range(2):
            tok[st] = A.vm('buffer_load_dwordx4 v[%d:%d], v2, s[%d:%d], s%d offen offset:%d %s' % (b+8+4*j, b+8+4*j+3, R_BT, R_BT+3, sB, (kp & 1)*2048 + j*1024, ld_flags))
        if kp & 1:
            A('s_add_u32 s%d, s%d, %d' % (sA, sA, 4096 if kp < 5 else 4096 + 3*12288))
            A('s_add_u32 s%d, s%d, 4096' % (sB, sB))
    for st in range(2): issue(st)
    srd(A, R_X, S_X, 2048*896); srd(A, R_OUT, S_OUT, 2048*1792)
    A('v_lshrrev_b32 v3, 4, v0'); A('v_and_b32 v4, 15, v0')
    A('s_lshr_b32 s3, s%d, 1' % sW); A('s_lshl_b32 s3, s3, 4'); A('s_and_b32 s%d, s%d, 1' % (sT0, sW)); A('s_lshl_b32 s%d, s%d, 3' % (sT0, sT0))
    A('s_add_u32 s3, s3, s%d' % sT0); A('s_lshl_b32 s%d, s%d, 6' % (sT0, sR)); A('s_add_u32 s3, s3, s%d' % sT0)
    A('v_add_u32 v5, s3, v3')
    A('s_lshl_b32 s%d, s%d, 7' % (sT0, sC))
    A('v_lshl_add_u32 v6, v4, 3, s%d' % sT0)
    A('v_mul_u32_u24 v7, 896, v5'); A('v_add_u32 v7, v7, v6')
    A('v_lshlrev_b32 v8, 1, v7')
    A('v_lshlrev_b32 v9, 3, v5'); A('v_add_u32 v9, 0x%x, v9' % WS_STAT)
    DR = [0, 32, 4, 36]
    sD = [None, 64, 65, 66]
    for it in range(1, 4): A('s_mov_b32 s%d, %d' % (sD[it], DR[it]*896))
    rtk = []
    for it in range(4):
        A.vm('buffer_load_dwordx2 v[%d:%d], v7, s[%d:%d], %s offen' % (10+2*it, 11+2*it, R_X, R_X+3, 's%d' % sD[it] if it else '0'))
        A.vm('global_load_dwordx2 v[%d:%d], v9, s[44:45] offset:%d' % (18+2*it, 19+2*it, DR[it]*8))
    tres = A.vm('global_load_dwordx2 v[26:27], v6, s[%d:%d]' % (S_DSK, S_DSK+1))
    for st in range(2, DEPTH): issue(st)
    ST()
    A.wait(vm=tres)
    RES = 224
    A('v_lshlrev_b32 v28, 16, v26'); A('v_and_b32 v29, 0xffff0000, v26'); A('v_lshlrev_b32 v30, 16, v27'); A('v_and_b32 v31, 0xffff0000, v27')
    for it in range(4):
        o = RES + 4*it; m, r = 18+2*it, 19+2*it
        for hf in range(2):
            src = 10 + 2*it + hf
            A('v_lshlrev_b32 v%d, 16, v%d' % (o+2*hf, src)); A('v_and_b32 v%d, 0xffff0000, v%d' % (o+2*hf+1, src))
            A('v_sub_f32 v240, v%d, v%d' % (o+2*hf, m)); A('v_sub_f32 v241, v%d, v%d' % (o+2*hf+1, m))
            A('v_cvt_pk_bf16_f32 v242, v240, v241')
            A('v_lshlrev_b32 v240, 16, v242'); A('v_and_b32 v241, 0xffff0000, v242')
            A('v_mul_f32 v240, v240, v%d' % r); A('v_mul_f32 v241, v241, v%d' % r)
            A('v_cvt_pk_bf16_f32 v242, v240, v241')
            A('v_lshlrev_b32 v240, 16, v242'); A('v_and_b32 v241, 0xffff0000, v242')
            A('v_mul_f32 v240, v240, v%d' % (28+2*hf)); A('v_mul_f32 v241, v241, v%d' % (29+2*hf))
            A('v_cvt_pk_bf16_f32 v242, v240, v241')
            A('v_lshlrev_b32 v240, 16, v242'); A('v_and_b32 v241, 0xffff0000, v242')
            A('v_add_f32 v%d, v%d, v240' % (o+2*hf, o+2*hf)); A('v_add_f32 v%d, v%d, v241' % (o+2*hf+1, o+2*hf+1))
    ST()
    AC = 32
    for st in range(42):
        A.wait(vm=tok[st])
        b = FB + 16*(st % DEPTH)
        for i in range(2):
            for j in range(2):
                c0 = AC + 32*i + 16*j
                c = 'v[%d:%d]' % (c0, c0+15)
                A('%s %s, v[%d:%d], v[%d:%d], %s' % (MFMA, c, b+8+4*j, b+8+4*j+3, b+4*i, b+4*i+3, c if st else '0'))
        issue(st + DEPTH)
        if st == 20: ST()
    ST()
    A('v_and_b32 v10, 31, v0'); A('v_lshrrev_b32 v11, 5, v0')
    A('v_mul_u32_u24 v10, 272, v10'); A('v_lshl_add_u32 v10, v11, 4, v10')
    A('s_mul_i32 s3, s%d, 17408' % sW); A('v_add_u32 v10, s3, v10')
    for i in range(2):
        for j in range(2):
            for z in range(4):
                c0 = AC + 32*i + 16*j + 4*z
                A.ds('ds_write_b128 v10, v[%d:%d] offset:%d' % (c0, c0+3, i*8704 + j*128 + z*32))
    A('s_lshl_b32 s3, s%d, 4' % sW)
    A('v_add_u32 v11, s3, v3'); A('v_mul_u32_u24 v11, 272, v11'); A('v_lshl_add_u32 v11, v4, 4, v11')
    A.wait_all(vm=False)
    A('s_barrier')
    t = {}
    for it in range(4):
        for pw in range(4):
            o = 96 + 16*it + 4*pw
            t[(it, pw)] = A.ds('ds_read_b128 v[%d:%d], v11 offset:%d' % (o, o+3, pw*17408 + it*1088))
    for it in range(1, 4): A('s_mov_b32 s%d, %d' % (sD[it], DR[it]*1792))
    for it in range(4):
        o = RES + 4*it
        for pw in range(4):
            A.wait(lg=t[(it, pw)])
            p = 96 + 16*it + 4*pw
            A('v_pk_add_f32 v[%d:%d], v[%d:%d], v[%d:%d]' % (o, o+1, o, o+1, p, p+1))
            A('v_pk_add_f32 v[%d:%d], v[%d:%d], v[%d:%d]' % (o+2, o+3, o+2, o+3, p+2, p+3))
        A.vm('buffer_store_dwordx4 v[%d:%d], v8, s[%d:%d], %s offen' % (o, o+3, R_OUT, R_OUT+3, 's%d' % sD[it] if it else '0'))
    ST()
    ST.dump(sW, 1)
    A('L2_done:')
    A('s_endpgm')
    return A.finish()

def kd(name, vgpr, accum):
    return """.p2align 6
.amdhsa_kernel %s
  .amdhsa_next_free_vgpr %d
  .amdhsa_next_free_sgpr 102
  .amdhsa_accum_offset %d
  .amdhsa_group_segment_fixed_size 0
  .amdhsa_kernarg_size 120
  .amdhsa_user_sgpr_count 2
  .amdhsa_user_sgpr_kernarg_segment_ptr 1
  .amdhsa_system_sgpr_workgroup_id_x 1
.end_amdhsa_kernel
""" % (name, vgpr, accum)

def generate(stamps=False):
    out = []
    out.append('; @launch kernel=p1_kernel grid=(256,1,1) block=(256,1,1) lds=157696')
    out.append('; @launch kernel=p2_kernel grid=(224,1,1) block=(256,1,1) lds=69632')
    out.append('.amdgcn_target "amdgcn-amd-amdhsa--gfx950"')
    out.append('.text')
    for name, body in (('p1_kernel', gen_p1(stamps)), ('p2_kernel', gen_p2(stamps))):
        out.append('.globl %s\n.p2align 8\n.type %s,@function' % (name, name))
        out += body
    out.append('.section .rodata,"a"')
    out.append(kd('p1_kernel', 480, 256)); out.append(kd('p2_kernel', 256, 256))
    return '\n'.join(out) + '\n'

if __name__ == '__main__':
    stamps = '--stamps' in sys.argv
    path = [a for a in sys.argv[1:] if not a.startswith('--')]
    open(path[0] if path else 'k1.s', 'w').write(generate(stamps))
```

```python
import sys, struct
sys.path.insert(0, "work")
from asmlib import *
from gen1 import (WS_H, SZ_H, WS_BT, SZ_BT, WS_AGG, WS_EPOCH, WS_STAMP, LOG2E, INV2PI, f2u, DPP_X1, DPP_X2, DPP_HM, MFMA,
                  S_X, S_LRE, S_LIM, S_BRE, S_BIM, S_CRE, S_CIM, S_LDT, S_DSK, S_W1, S_W2, S_OUT, S_DBG, S_WS,
                  load_args, srd, bf16r, decode_ids, lam_base, lam_pow, kd)
KN = 'parallel_sum__ssm_conv_s5__dense_activation_silu__prompt_kernel'
WS_FH = 0x00E50000
WS_FB = 0x00E54000
SPIN_MAX = 0x20000

class Stamps:
    def __init__(self, A, on, base=94, npair=4, vreg=253):
        self.A, self.on, self.base, self.npair, self.v = A, on, base, npair, vreg
        self.n = 0; self.pend = []
    def __call__(self):
        if not self.on: return
        assert len(self.pend) < self.npair, "harvest needed"
        p = self.base + 2*len(self.pend)
        self.A('s_memtime s[%d:%d]' % (p, p+1)); self.pend.append((p, self.n)); self.n += 1
    def harvest(self):
        if not self.on or not self.pend: return
        self.A.wait_all(vm=False)
        for p, n in self.pend: self.A('v_writelane_b32 v%d, s%d, %d' % (self.v, p, n))
        self.pend = []
    def dump(self, sW):
        if not self.on: return
        self.harvest()
        A = self.A
        A('s_lshl_b32 s3, s2, 2'); A('s_add_u32 s3, s3, s%d' % sW); A('s_lshl_b32 s3, s3, 8')
        A('s_add_u32 s3, s3, 0x%x' % WS_STAMP)
        A('v_lshl_add_u32 v1, v0, 2, s3')
        A('global_store_dword v1, v%d, s[44:45]' % self.v)

class Filler:
    def __init__(self): self.q = []
    def add(self, g): self.q.append(g)
    def pull(self, n):
        while n > 0 and self.q:
            try:
                next(self.q[0]); n -= 1
            except StopIteration:
                self.q.pop(0)
    def drain(self): self.pull(1 << 30)

def gen(stamps=False, P=None):
    P = P or {}
    A = Asm(); ST = Stamps(A, stamps)
    OOL = []
    sW, sR, sS, sU, sRing, sTag, sEp = 4, 5, 6, 7, 8, 9, 10
    sT0, sT1, sT2, sT3 = 11, 12, 13, 14
    R_X, R_BRE, R_BIM, R_W1, R_H, R_AGG, R_BT, R_OUT = 48, 52, 56, 60, 64, 72, 76, 80
    sHo = [46, 47, 15]
    sSoS, sSoW, sB, sA, sBb, sAb = 68, 69, 84, 85, 90, 91
    sD = [None, 52, 53, 54]
    ACS, ACF, WB = 48, 80, 144
    RING0, RINGB, NG = 59392, 24576, 6
    STAT_S, STAT_R, STAT_M = 58240, 58240 + 256, 58240 + 512
    A(KN + ':')
    ST()
    A('s_cmp_ge_u32 s2, 256')
    A('s_cbranch_scc1 L_done')
    load_args(A)
    decode_ids(A, sW, sR, sS, sT0, sT1, sT2, 'L_pretile')
    A('s_lshl_b32 s%d, s%d, 2' % (sU, sS))
    A('s_add_u32 s%d, s%d, s%d' % (sU, sU, sW))
    A('v_lshrrev_b32 v34, 3, v0')
    A('v_and_b32 v35, 7, v0')
    A('v_mul_u32_u24 v2, 896, v34')
    A('v_lshl_add_u32 v2, v35, 4, v2')
    A('s_lshl_b32 s%d, s%d, 2' % (sT0, sR))
    A('s_add_u32 s%d, s%d, s%d' % (sT0, sT0, sW))
    A('s_mul_i32 s%d, s%d, %d' % (sT0, sT0, 16*896))
    A('s_add_u32 s%d, s%d, %d' % (sT1, sT0, 8*896))
    A('s_mov_b32 s%d, 0x%x' % (R_X+2, 2048*896)); A('s_mov_b32 s%d, 0x00020000' % (R_X+3))
    A('v_and_b32 v36, 31, v0')
    A('v_and_b32 v37, 30, v0')
    A('s_lshl_b32 s3, s%d, 5' % sU)
    A('v_add_u32 v37, s3, v37')
    A('s_waitcnt lgkmcnt(0)')
    A('s_mov_b32 s%d, s%d' % (R_X, S_X)); A('s_mov_b32 s%d, s%d' % (R_X+1, S_X+1))
    xt = []
    def xload(n):
        rs, jj = divmod(n, 7)
        r0 = 48 + 28*rs + 4*jj
        xt.append(A.vm('buffer_load_dwordx4 v[%d:%d], v2, s[%d:%d], s%d offen offset:%d' % (r0, r0+3, R_X, R_X+3, sT0+rs, jj*128)))
    for n in range(12): xload(n)
    A('s_add_u32 s70, s44, 0x%x' % WS_EPOCH); A('s_addc_u32 s71, s45, 0')
    A('s_load_dword s%d, s[70:71], 0' % sEp)
    srd(A, R_BRE, S_BRE, 448*896 + 4096, -4096)
    srd(A, R_BIM, S_BIM, 448*896 + 4096, -4096)
    srd(A, R_W1, S_W1, 448*3584)
    A('v_and_b32 v38, 6, v34')
    A('v_xor_b32 v38, v38, v35')
    A('v_xor_b32 v39, 1, v38')
    A('v_mul_u32_u24 v1, 896, v34')
    A('v_lshl_add_u32 v38, v38, 4, v1')
    A('v_lshl_add_u32 v39, v39, 4, v1')
    for k in range(4):
        ri, ph = k >> 1, k & 1
        A('v_add_u32 v%d, %d, v%d' % (5+k, ph*8*896 + 4096 - 1024*k, 38+ri))
    A('v_lshlrev_b32 v38, 1, v34')
    A('v_and_b32 v38, 4, v38')
    A('v_xor_b32 v38, v38, v35')
    A('v_mul_u32_u24 v1, 3584, v34')
    A('v_lshl_add_u32 v38, v38, 4, v1')
    for k in range(4):
        A('v_add_u32 v%d, %d, v38' % (9+k, k*(8*3584 - 1024)))
    A('s_mul_i32 s%d, s%d, %d' % (sRing, sW, RINGB))
    A('s_add_u32 s%d, s%d, %d' % (sRing, sRing, RING0))
    A('s_mul_i32 s%d, s%d, %d' % (sSoS, sU, 16*896))
    A('s_lshl_b32 s%d, s%d, 7' % (sSoW, sU))
    A('v_lshrrev_b32 v38, 5, v0')
    A('v_and_b32 v39, 3, v34')
    A('v_lshl_add_u32 v39, v38, 3, v39')
    A('s_and_b32 s3, s%d, 1' % sW); A('s_lshl_b32 s3, s3, 5')
    A('s_lshr_b32 s%d, s%d, 1' % (sT2, sW)); A('s_lshl_b32 s%d, s%d, 2' % (sT2, sT2)); A('s_add_u32 s3, s3, s%d' % sT2)
    A('v_add_u32 v39, s3, v39')
    A('v_mul_u32_u24 v3, 1040, v35')
    A('v_lshl_add_u32 v3, v39, 4, v3')
    A('v_lshlrev_b32 v44, 2, v39')
    A('v_mul_u32_u24 v4, 1040, v38')
    A('v_lshl_add_u32 v4, v36, 4, v4')
    A('v_and_b32 v45, 1, v0')
    A('v_bfe_u32 v46, v0, 1, 3')
    A('v_bfe_u32 v47, v0, 4, 1')
    A('v_lshl_add_u32 v47, v45, 1, v47')
    A('v_and_b32 v1, 6, v46')
    A('v_or_b32 v1, v1, v45')
    A('v_xor_b32 v1, v1, v38')
    A('v_lshlrev_b32 v1, 4, v1')
    A('v_lshl_add_u32 v1, v46, 7, v1')
    A('v_lshl_add_u32 v1, v47, 10, v1')
    A('v_add_u32 v13, s%d, v1' % sRing)
    for sp in range(1, 4): A('v_xor_b32 v%d, %d, v13' % (13+sp, 32*sp))
    A('v_bfe_u32 v46, v0, 2, 2')
    A('v_and_b32 v47, 3, v0')
    A('v_lshlrev_b32 v1, 3, v47')
    A('v_lshl_add_u32 v1, v46, 7, v1')
    A('v_lshrrev_b32 v46, 1, v46')
    A('v_lshl_add_u32 v1, v46, 6, v1')
    A('v_bfe_u32 v46, v0, 4, 1')
    A('v_lshl_add_u32 v1, v46, 5, v1')
    A('v_lshl_add_u32 v1, v38, 10, v1')
    A('v_add_u32 v17, s%d, v1' % sRing)
    A('v_xor_b32 v18, 64, v17')
    A('v_lshlrev_b32 v19, 4, v0')
    srd(A, R_H, S_WS, SZ_H); srd(A, R_BT, S_WS, SZ_BT, WS_BT); srd(A, R_OUT, S_OUT, 2048*1792)
    srd(A, R_AGG, S_WS, 8192, WS_AGG)
    A('s_lshl_b32 s3, s%d, 13' % sU)
    A('s_add_u32 s%d, s%d, s3' % (R_AGG, R_AGG)); A('s_addc_u32 s%d, s%d, 0' % (R_AGG+1, R_AGG+1))
    A('s_mul_i32 s3, s%d, 28' % sR); A('s_add_u32 s%d, s3, s%d' % (sAb, sW)); A('s_add_u32 s3, s3, s%d' % sU)
    A('s_mul_i32 s%d, s3, 12288' % sHo[0])
    A('s_add_u32 s%d, s%d, 4096' % (sHo[1], sHo[0])); A('s_add_u32 s%d, s%d, 8192' % (sHo[2], sHo[0]))
    A('s_mul_i32 s%d, s%d, 12288' % (sAb, sAb))
    A('s_mul_i32 s%d, s%d, %d' % (sBb, sU, 7*12288))
    for n in range(12, 14): xload(n)
    tl = [A.vm('global_load_ushort v%d, v37, s[%d:%d]' % (41+i, b, b+1)) for i, b in enumerate((S_LRE, S_LIM, S_LDT))]
    if P.get('codepf', 1):
        A('s_getpc_b64 s[88:89]')
        A('L_pc:')
        A('s_mul_i32 s3, s%d, %d' % (sU, 7*128))
        A('v_and_b32 v1, 7, v0'); A('v_min_u32 v1, 6, v1'); A('v_lshl_add_u32 v1, v1, 7, s3')
        A('v_min_u32 v1, L_end-L_pc-4, v1')
        A.vm('global_load_dword v252, v1, s[88:89]')

    prog = {'S': -1, 'F': -1, 'own': False, 'lbdone': False, 'btok': False}
    gtok, bttok = {}, {}
    def bt_reg(n):
        if n < 8: return 'a', 224 + 4*n
        if n < 64: return 'a', 4*(n - 8)
        if n < 72: return 'v', 176 + 4*(n - 64)
        return bt_reg(n - 72)
    def pipe_gen():
        for g in range(21):
            if g >= NG:
                pg = g - NG
                while not (prog['S'] >= 4*pg + 3 if pg < 7 else prog['F'] >= 2*(pg - 7) + 1): yield False
            A('s_add_u32 m0, s%d, %d' % (sRing, (g % NG)*4096))
            for k in range(4):
                if g < 7:
                    R = R_BRE if k < 2 else R_BIM
                    t = A.vm('buffer_load_dwordx4 v%d, s[%d:%d], s%d offen offset:%d lds' % (5+k, R, R+3, sSoS, 1024*k))
                else:
                    t = A.vm('buffer_load_dwordx4 v%d, s[%d:%d], s%d offen offset:%d lds' % (9+k, R_W1, R_W1+3, sSoW, 1024*k))
                if k == 3:
                    gtok[g] = t
                    if g < 7: A('s_add_u32 s%d, s%d, 128' % (sSoS, sSoS))
                    else: A('s_add_u32 s%d, s%d, %d' % (sSoW, sSoW, 32*3584))
                yield True
        while not prog['btok']: yield False
        for n in range(84):
            un, rem = divmod(n, 12)
            if 8 <= n < 64:
                while prog['F'] < (n - 8)//2: yield False
            elif 64 <= n < 72:
                while not prog['lbdone']: yield False
            elif n >= 72:
                while not prog['own']: yield False
            if rem == 0:
                if un == 0:
                    A('s_mul_i32 s%d, s%d, 12288' % (sB, sS))
                else:
                    A('s_cmp_gt_u32 s%d, %d' % (sS, un - 1))
                    A('s_mov_b32 s%d, %d' % (sB, un*12288))
                    A('s_cselect_b32 s92, 12288, 0')
                    A('s_sub_u32 s%d, s%d, s92' % (sB, sB))
                A('s_add_u32 s%d, s%d, s%d' % (sB, sB, sBb))
            elif rem % 4 == 0:
                A('s_add_u32 s%d, s%d, 4096' % (sB, sB))
            k, r0 = bt_reg(n)
            bttok[n] = A.vm('buffer_load_dwordx4 %s[%d:%d], v19, s[%d:%d], s%d offen offset:%d sc1' % (k, r0, r0+3, R_BT, R_BT+3, sB, (rem % 4)*1024))
            yield True
    pg_ = pipe_gen()
    def pipe(n=1):
        while n > 0:
            try:
                if not next(pg_): return
            except StopIteration:
                return
            n -= 1

    def poll(name, vF, vAddr, mask_lo, mask_hi, tok):
        A.wait(vm=tok)
        chk = ['v_cmp_eq_u32 vcc, v%d, v40' % vF, 's_and_b64 s[88:89], vcc, s[86:87]', 's_cmp_eq_u64 s[88:89], s[86:87]']
        for c in chk: A(c)
        A('s_cbranch_scc0 L_rt_%s' % name)
        A('L_bk_%s:' % name)
        O = ['L_rt_%s:' % name, 's_mov_b32 s%d, 0' % sT3, 'L_rl_%s:' % name, 's_sleep 1',
             'global_load_dword v%d, v%d, s[44:45] sc1' % (vF, vAddr), 's_waitcnt vmcnt(0)'] + chk + \
            ['s_cbranch_scc1 L_bk_%s' % name, 's_add_u32 s%d, s%d, 1' % (sT3, sT3), 's_cmp_lt_u32 s%d, 0x%x' % (sT3, SPIN_MAX),
             's_cbranch_scc1 L_rl_%s' % name, 's_branch L_bk_%s' % name]
        OOL.extend(O)

    ST()
    U0 = 104
    for rs in range(2):
        for jj in range(7):
            A.wait(vm=xt[7*rs+jj])
            for e in range(4):
                src = 48 + 28*rs + 4*jj + e; d = U0 + 56*rs + 8*jj + 2*e
                A('v_lshlrev_b32 v%d, 16, v%d' % (d, src))
                A('v_and_b32 v%d, 0xffff0000, v%d' % (d+1, src))
                acc = 216 + 4*rs + 2*(e & 1)
                if jj == 0 and e < 2: A('v_mov_b64 v[%d:%d], v[%d:%d]' % (acc, acc+1, d, d+1))
                else: A('v_pk_add_f32 v[%d:%d], v[%d:%d], v[%d:%d]' % (acc, acc+1, acc, acc+1, d, d+1))
            if 7*rs + jj >= P.get('ln_pipe0', 4): pipe(1)
    ST()
    def reduce8(regs):
        for dpp in (DPP_X1, DPP_X2, DPP_HM):
            for r in regs: A('v_add_f32_dpp v%d, v%d, v%d %s' % (r, r, r, dpp))
    for rs in range(2):
        a = 216 + 4*rs
        A('v_pk_add_f32 v[%d:%d], v[%d:%d], v[%d:%d]' % (a, a+1, a, a+1, a+2, a+3))
        A('v_add_f32 v%d, v%d, v%d' % (a, a, a+1))
    reduce8([216, 220])
    for rs in range(2):
        a = 216 + 4*rs
        A('v_mul_f32 v%d, %s, v%d' % (a+2, f2u(1.0/448), a))
        bf16r(A, a, a+2)
        A('v_sub_f32 v%d, v%d, v%d' % (a+2, a+2, a))
    pipe(1)
    for rs in range(2):
        a = 216 + 4*rs; q = 224 + 4*rs
        for jj in range(7):
            for e in range(4):
                d = U0 + 56*rs + 8*jj + 2*e; dst = 48 + 28*rs + 4*jj + e
                A('v_pk_add_f32 v[%d:%d], v[%d:%d], v[%d:%d] op_sel_hi:[1,0] neg_lo:[0,1] neg_hi:[0,1]' % (d, d+1, d, d+1, a, a+1))
                A('v_cvt_pk_bf16_f32 v%d, v%d, v%d' % (dst, d, d+1))
                qq = q + 2*(e & 1)
                if jj == 0 and e < 2: A('v_pk_mul_f32 v[%d:%d], v[%d:%d], v[%d:%d]' % (qq, qq+1, d, d+1, d, d+1))
                else: A('v_pk_fma_f32 v[%d:%d], v[%d:%d], v[%d:%d], v[%d:%d]' % (qq, qq+1, d, d+1, d, d+1, qq, qq+1))
            r0 = 48 + 28*rs + 4*jj
            A.ds('ds_write_b128 v3, v[%d:%d] offset:%d' % (r0, r0+3, jj*8320 + rs*256))
            pipe(1)
    for rs in range(2):
        q = 224 + 4*rs
        A('v_pk_add_f32 v[%d:%d], v[%d:%d], v[%d:%d]' % (q, q+1, q, q+1, q+2, q+3))
        A('v_add_f32 v%d, v%d, v%d' % (q, q, q+1))
    reduce8([224, 228])
    A('s_lshl_b32 s3, s%d, 6' % sW)
    A('v_lshl_add_u32 v45, v34, 2, s3')
    for rs in range(2):
        a = 216 + 4*rs; q = 224 + 4*rs
        A('v_mul_f32 v%d, v%d, v%d' % (a+2, a+2, a+2))
        A('v_mul_f32 v%d, %s, v%d' % (q, f2u(1.0/448), q))
        A('v_sub_f32 v%d, v%d, v%d' % (q, q, a+2))
        A('v_max_f32 v%d, 0, v%d' % (q, q))
        bf16r(A, q, q)
        A('v_add_f32 v%d, %s, v%d' % (q, f2u(1e-5), q))
        bf16r(A, q, q)
    for rs in range(2): A('v_sqrt_f32 v%d, v%d' % (224+4*rs, 224+4*rs))
    for rs in range(2): bf16r(A, 224+4*rs, 224+4*rs)
    for rs in range(2): A('v_rcp_f32 v%d, v%d' % (217+4*rs, 224+4*rs))
    for rs in range(2):
        a = 216 + 4*rs; q = 224 + 4*rs
        A.ds('ds_write_b32 v44, v%d offset:%d' % (q, STAT_S + rs*64))
        A.ds('ds_write_b32 v45, v%d offset:%d' % (a, STAT_M + rs*32))
        A.ds('ds_write_b32 v45, v%d offset:%d' % (a+1, STAT_R + rs*32))
    pipe(99)
    ST()
    A.wait_all(vm=False)
    ST.harvest()
    A('s_barrier')

    def g_setup():
        A('s_add_u32 s%d, s%d, 2' % (sEp, sEp)); yield
        A('s_or_b32 s%d, s%d, 1' % (sTag, sEp)); yield
        A('v_mov_b32 v40, s%d' % sTag); yield
        A('s_cmp_lg_u32 s%d, 0' % sW)
        A('s_cbranch_scc1 L_nocount')
        A('s_mov_b64 exec, 1')
        A('v_mov_b32 v254, 1'); A('v_mov_b32 v255, 0')
        A('global_atomic_add v254, v255, v254, s[%d:%d] sc0 sc1' % (S_DBG, S_DBG+1))
        A('s_mov_b64 exec, -1')
        A('L_nocount:'); yield
        A.wait(vm=tl[2]); yield
        B = Asm()
        lam_base(B, 41, 42, 43)
        B('v_mul_f32 v41, v41, v43'); B('v_mul_f32 v42, v42, v43')
        B('v_mul_f32 v41, %s, v41' % f2u(LOG2E)); B('v_mul_f32 v42, %s, v42' % f2u(INV2PI))
        B('v_and_b32 v45, 1, v0'); B('v_lshlrev_b32 v45, 31, v45'); B('v_xor_b32 v45, 0x80000000, v45')
        for n, d in {1: 20, 16: 22, 32: 24, 64: 26, 128: 28}.items():
            lam_pow(B, n, 41, 42, d, d+1, 43)
            B('v_xor_b32 v%d, v45, v%d' % (d+1, d+1))
        B('v_lshlrev_b32 v46, 2, v36'); B('v_lshlrev_b32 v47, 7, v38')
        for l in B.L: A(l); yield
        for i in range(2): A.ds('ds_read_b32 v%d, v46 offset:%d' % (30+i, STAT_S + 128*i)); yield
        for k in range(8): A.ds('ds_read_b128 v[%d:%d], v47 offset:%d' % (176+4*k, 179+4*k, STAT_R + 16*k)); yield
    def cmul_add(d, mu, v, add):
        A('v_fma_f32 v%d, v%d, v%d, v%d' % (d, mu, v, add)); yield
        A('v_fmac_f32_dpp v%d, v%d, v%d %s' % (d, v, mu+1, DPP_X1)); yield
    def g_stageA():
        for k in range(32): A('v_mul_f32 v%d, v%d, v%d' % (ACS+k, ACS+k, 176+k)); yield
        TA = 208
        cur = [ACS, ACS+16]
        for j in range(1, 16):
            nd = [TA + 2*i + (j & 1) for i in range(2)]
            for i in range(2): A('v_fma_f32 v%d, v20, v%d, v%d' % (nd[i], cur[i], ACS+16*i+j)); yield
            for i in range(2): A('v_fmac_f32_dpp v%d, v%d, v21 %s' % (nd[i], cur[i], DPP_X1)); yield
            cur = nd
        a0, a1 = cur
        A('v_mov_b32 v34, v%d' % a0); yield
        A('v_lshlrev_b32 v46, 3, v36'); yield
        A('v_mov_b32 v45, v40'); yield
        yield from cmul_add(35, 22, 34, a1)
        A('v_mov_b32 v39, v35'); yield
        A('s_lshl_b32 s%d, s%d, 8' % (sT2, sR)); yield
        A('v_permlane32_swap_b32 v35, v39'); yield
        yield from cmul_add(44, 24, 35, 39)
        A.vm('buffer_store_dwordx2 v[44:45], v46, s[%d:%d], s%d offen sc1' % (R_AGG, R_AGG+3, sT2)); yield
    toks = {}
    def g_btpoll_issue():
        A('s_lshl_b32 s3, s%d, 8' % sS); yield
        A('s_add_u32 s3, s3, 0x%x' % WS_FB); yield
        A('v_lshl_add_u32 v37, v0, 2, s3'); yield
        toks['bt'] = A.vm('global_load_dword v43, v37, s[44:45] sc1'); yield
        A('s_lshl_b32 s86, 0x1111111, s%d' % sW); yield
        A('s_or_b32 s86, s86, 0xf0000000'); yield
        A('s_mov_b32 s87, 0x3ff'); yield
    def g_btpoll_check():
        poll('bt', 43, 37, None, None, toks['bt']); prog['btok'] = True; yield
    RES = 236
    DR = [0, 32, 4, 36]
    def g_res_issue():
        B = Asm()
        B('v_lshrrev_b32 v5, 4, v0'); B('v_and_b32 v6, 15, v0')
        B('s_lshr_b32 s3, s%d, 1' % sW); B('s_lshl_b32 s3, s3, 4'); B('s_and_b32 s%d, s%d, 1' % (sT0, sW)); B('s_lshl_b32 s%d, s%d, 3' % (sT0, sT0))
        B('s_add_u32 s3, s3, s%d' % sT0)
        B('v_add_u32 v7, s3, v5')
        B('s_lshl_b32 s%d, s%d, 6' % (sT0, sR))
        B('v_add_u32 v8, s%d, v7' % sT0)
        B('v_lshlrev_b32 v7, 2, v7')
        B('s_lshl_b32 s%d, s%d, 7' % (sT0, sS))
        B('v_lshl_add_u32 v1, v6, 3, s%d' % sT0)
        B('v_mul_u32_u24 v8, 896, v8'); B('v_add_u32 v8, v8, v1')
        for it in range(1, 4): B('s_mov_b32 s%d, %d' % (sD[it], DR[it]*896))
        for l in B.L: A(l); yield
        for it in range(4):
            A.vm('buffer_load_dwordx2 v[%d:%d], v8, s[%d:%d], %s offen' % (212+2*it, 213+2*it, R_X, R_X+3, 's%d' % sD[it] if it else '0')); yield
        toks['res'] = A.vm('global_load_dwordx2 v[220:221], v1, s[%d:%d]' % (S_DSK, S_DSK+1)); yield
        for it in range(4):
            A.ds('ds_read_b32 v%d, v7 offset:%d' % (222+2*it, STAT_M + 4*DR[it])); yield
            toks['rst'] = A.ds('ds_read_b32 v%d, v7 offset:%d' % (223+2*it, STAT_R + 4*DR[it])); yield
        A('v_lshlrev_b32 v8, 1, v8'); yield
    def g_res():
        A.wait(vm=toks['res'], lg=toks['rst']); yield
        B = Asm()
        B('v_lshlrev_b32 v230, 16, v220'); B('v_and_b32 v231, 0xffff0000, v220'); B('v_lshlrev_b32 v232, 16, v221'); B('v_and_b32 v233, 0xffff0000, v221')
        for it in range(4):
            o = RES + 4*it; m, r = 222+2*it, 223+2*it
            for hf in range(2):
                src = 212 + 2*it + hf
                B('v_lshlrev_b32 v%d, 16, v%d' % (o+2*hf, src)); B('v_and_b32 v%d, 0xffff0000, v%d' % (o+2*hf+1, src))
                B('v_sub_f32 v234, v%d, v%d' % (o+2*hf, m)); B('v_sub_f32 v235, v%d, v%d' % (o+2*hf+1, m))
                B('v_cvt_pk_bf16_f32 v1, v234, v235')
                B('v_lshlrev_b32 v234, 16, v1'); B('v_and_b32 v235, 0xffff0000, v1')
                B('v_mul_f32 v234, v234, v%d' % r); B('v_mul_f32 v235, v235, v%d' % r)
                B('v_cvt_pk_bf16_f32 v1, v234, v235')
                B('v_lshlrev_b32 v234, 16, v1'); B('v_and_b32 v235, 0xffff0000, v1')
                B('v_mul_f32 v234, v234, v%d' % (230+2*hf)); B('v_mul_f32 v235, v235, v%d' % (231+2*hf))
                B('v_cvt_pk_bf16_f32 v1, v234, v235')
                B('v_lshlrev_b32 v234, 16, v1'); B('v_and_b32 v235, 0xffff0000, v1')
                B('v_add_f32 v%d, v%d, v234' % (o+2*hf, o+2*hf)); B('v_add_f32 v%d, v%d, v235' % (o+2*hf+1, o+2*hf+1))
        for l in B.L: A(l); yield

    F1 = Filler(); F1.add(g_setup())
    def s_read(s):
        g = s >> 2
        for i in range(2):
            a0 = 8*s + 4*i
            A.ds('ds_read_b128 a[%d:%d], v4 offset:%d' % (a0, a0+3, s*2080 + i*512))
        if (s & 3) == 0: A.wait(vm=gtok[g])
        b = WB + 4*(s % 4)
        return A.ds('ds_read_b128 v[%d:%d], v%d offset:%d' % (b, b+3, 13 + (s & 3), (g % NG)*4096))
    rt = {}
    LA = 3
    for s in range(LA): rt[s] = s_read(s)
    for s in range(28):
        A.wait(lg=rt[s])
        b = WB + 4*(s % 4)
        for i in range(2):
            c = 'v[%d:%d]' % (ACS+16*i, ACS+16*i+15)
            A('%s %s, a[%d:%d], v[%d:%d], %s' % (MFMA, c, 8*s+4*i, 8*s+4*i+3, b, b+3, c if s else '0'))
            if i == 0:
                prog['S'] = s - 1
                pipe(1); F1.pull(3)
            else:
                if s + LA < 28: rt[s+LA] = s_read(s+LA)
                F1.pull(1)
    prog['S'] = 27
    F1.drain()
    ST()
    def f_read(s):
        g = 7 + (s >> 1)
        if (s & 1) == 0: A.wait(vm=gtok[g])
        base = (g % NG)*4096 + (s & 1)*2048
        for q in range(2):
            b = WB + 8*(s % 4) + 4*q
            A.ds('ds_read_b64_tr_b16 v[%d:%d], v%d offset:%d' % (b, b+1, 17+q, base))
            t = A.ds('ds_read_b64_tr_b16 v[%d:%d], v%d offset:%d' % (b+2, b+3, 17+q, base+512))
        return t
    F2 = Filler()
    F2.add(g_stageA()); F2.add(g_btpoll_issue()); F2.add(g_res_issue())
    rt = {}
    pipe(2)
    for s in range(2): rt[s] = f_read(s)
    for s in range(28):
        A.wait(lg=rt[s])
        if s == P.get('bt_check', 13): F2.q.insert(0, g_btpoll_check())
        if s == P.get('res_at', 14): F2.add(g_res())
        n = 0
        for q in range(2):
            b = WB + 8*(s % 4) + 4*q
            for i in range(2):
                c0 = ACF + 32*q + 16*i
                c = 'v[%d:%d]' % (c0, c0+15)
                A('%s %s, v[%d:%d], a[%d:%d], %s' % (MFMA, c, b, b+3, 8*s+4*i, 8*s+4*i+3, c if s else '0'))
                if n == 0:
                    prog['F'] = s - 1
                    pipe(1); F2.pull(4 if s else 0)
                elif n == 1:
                    if s + 2 < 28: rt[s+2] = f_read(s+2)
                    F2.pull(1 if s else 0)
                elif n == 2:
                    pipe(1); F2.pull(4)
                else:
                    F2.pull(4)
                n += 1
    prog['F'] = 27
    F2.drain()
    ST()
    LB = 144
    A('s_sub_u32 s3, s%d, 1' % sR); A('s_lshl_b32 s3, s3, 8')
    A('v_lshlrev_b32 v47, 8, v38')
    A('v_sub_u32 v47, v46, v47')
    A('v_add_u32 v176, s3, v47')
    for m in range(1, 16): A('v_subrev_u32 v%d, %d, v176' % (176+m, 512*m))
    lbl = ['buffer_load_dwordx2 v[%d:%d], v%d, s[%d:%d], 0 offen sc1' % (LB+2*m, LB+2*m+1, 176+m, R_AGG, R_AGG+3) for m in range(16)]
    for i in range(2): A('v_rcp_f32 v%d, v%d' % (32+i, 30+i))
    for i in range(2): A('v_mul_f32 v%d, %s, v%d' % (32+i, f2u(-LOG2E), 32+i))
    E = 192
    blk = 0
    for q in range(2):
        for i in range(2):
            c0 = ACF + 32*q + 16*i
            for a in range(2):
                c = c0 + 8*a
                sel = 'op_sel_hi:[1,0]' if i == 0 else 'op_sel:[0,1]'
                sel3 = 'op_sel_hi:[1,0,0]' if i == 0 else 'op_sel:[0,1,1]'
                for e in range(0, 8, 2): A('v_pk_mul_f32 v[%d:%d], v[%d:%d], v[32:33] %s' % (E+e, E+e+1, c+e, c+e+1, sel))
                for e in range(8): A('v_exp_f32 v%d, v%d' % (E+e, E+e))
                pipe(1)
                for e in range(0, 8, 2): A('v_pk_fma_f32 v[%d:%d], v[%d:%d], v[30:31], v[30:31] %s' % (E+e, E+e+1, E+e, E+e+1, sel3))
                for e in range(8): A('v_rcp_f32 v%d, v%d' % (E+e, E+e))
                if blk < 4:
                    pipe(1)
                else:
                    for m in range(4*(blk-4), 4*(blk-4)+4): toks['lb'] = A.vm(lbl[m])
                for e in range(0, 8, 2): A('v_pk_mul_f32 v[%d:%d], v[%d:%d], v[%d:%d]' % (E+e, E+e+1, E+e, E+e+1, c+e, c+e+1))
                for e in range(4): A('v_cvt_pk_bf16_f32 v%d, v%d, v%d' % (c+e, E+2*e, E+2*e+1))
                A.vm('buffer_store_dwordx4 v[%d:%d], v19, s[%d:%d], s%d offen offset:%d sc1' % (c, c+3, R_H, R_H+3, sHo[q], a*2048 + i*1024))
                blk += 1
    ST()
    ST.harvest()
    pipe(2)
    cnt = ['s_mov_b32 s%d, 0' % sT0]
    for m in range(16):
        cnt += ['v_cmp_eq_u32 vcc, v%d, v40' % (LB+2*m+1), 's_bcnt1_i32_b64 s3, vcc', 's_add_u32 s%d, s%d, s3' % (sT0, sT0)]
    cnt += ['s_cmp_eq_u32 s%d, s%d' % (sT0, sT1)]
    A('s_lshl_b32 s%d, s%d, 5' % (sT1, sR))
    A.wait(vm=toks['lb'])
    for k, c in enumerate(cnt):
        A(c)
    A('s_cbranch_scc0 L_rt_lb')
    A('L_bk_lb:')
    OOL.extend(['L_rt_lb:', 's_mov_b32 s%d, 0' % sT3, 'L_rl_lb:', 's_sleep 1'] + lbl + ['s_waitcnt vmcnt(0)'] + cnt +
               ['s_cbranch_scc1 L_bk_lb', 's_add_u32 s%d, s%d, 1' % (sT3, sT3), 's_cmp_lt_u32 s%d, 0x%x' % (sT3, SPIN_MAX),
                's_cbranch_scc1 L_rl_lb', 's_branch L_bk_lb'])
    prog['lbdone'] = True
    pipe(2)
    def g_stageB():
        cur = LB + 30
        for m in range(14, -1, -1):
            nd = 41 + (m & 1)
            A('v_fma_f32 v%d, v28, v%d, v%d' % (nd, cur, LB+2*m)); yield
            A('s_nop 0'); yield
            A('v_fmac_f32_dpp v%d, v%d, v29 %s' % (nd, cur, DPP_X1)); yield
            cur = nd
        A('v_mov_b32 v43, v%d' % cur); yield
        A('v_permlane32_swap_b32 v%d, v43' % cur); yield
        yield from cmul_add(44, 26, 43, cur)
        yield from cmul_add(41, 24, 44, 35)
        A('v_cmp_eq_u32 vcc, 0, v38'); yield
        A('v_cndmask_b32 v41, v41, v44, vcc'); yield
        yield from cmul_add(42, 22, 41, 34)
        cur = [41, 42]
        for j in range(16):
            nd = [ACS + 16*i + j for i in range(2)]
            for i in range(2): A('v_fma_f32 v%d, v20, v%d, v%d' % (nd[i], cur[i], nd[i])); yield
            for i in range(2): A('v_fmac_f32_dpp v%d, v%d, v21 %s' % (nd[i], cur[i], DPP_X1)); yield
            cur = nd
        for k in range(16): A('v_cvt_pk_bf16_f32 v%d, v%d, v%d' % (144+k, ACS+2*k, ACS+2*k+1)); yield
        A('v_mul_u32_u24 v46, 144, v36'); yield
        A('v_lshl_add_u32 v46, v38, 6, v46'); yield
        A('v_add_u32 v46, s%d, v46' % sRing); yield
        for k in range(4): tw = A.ds('ds_write_b128 v46, v[%d:%d] offset:%d' % (144+4*k, 147+4*k, 16*k)); yield
        B = Asm()
        B('v_bfe_u32 v47, v0, 2, 2'); B('v_lshl_add_u32 v47, v38, 3, v47'); B('v_mul_u32_u24 v47, 144, v47')
        B('v_and_b32 v1, 1, v0'); B('v_lshl_add_u32 v47, v1, 6, v47')
        B('v_bfe_u32 v1, v0, 1, 1'); B('v_lshl_add_u32 v47, v1, 3, v47')
        B('v_bfe_u32 v1, v0, 4, 1'); B('v_lshl_add_u32 v47, v1, 4, v47')
        B('v_add_u32 v47, s%d, v47' % sRing)
        for l in B.L: A(l); yield
        A.wait(lg=tw); yield
        tr = {}
        for a in range(2):
            for i in range(2):
                o = 208 + 8*a + 4*i
                A.ds('ds_read_b64_tr_b16 v[%d:%d], v47 offset:%d' % (o, o+1, a*16*144 + 32*i)); yield
                tr[(a, i)] = A.ds('ds_read_b64_tr_b16 v[%d:%d], v47 offset:%d' % (o+2, o+3, a*16*144 + 4*144 + 32*i)); yield
        for a in range(2):
            for i in range(2):
                o = 208 + 8*a + 4*i
                A.wait(lg=tr[(a, i)])
                toks['hst'] = A.vm('buffer_store_dwordx4 v[%d:%d], v19, s[%d:%d], s%d offen offset:%d sc1' % (o, o+3, R_H, R_H+3, sHo[2], a*2048 + i*1024)); yield
    F3 = Filler(); F3.add(g_stageB())
    while F3.q:
        F3.pull(16); pipe(1)
    ST()
    def acc(i, j):
        c0 = (ACS if i == 0 else WB) + 16*j
        return 'v[%d:%d]' % (c0, c0+15)
    def own_frag(kp, i):
        if kp < 4: return ACF + 32*(kp >> 1) + 16*i + 8*(kp & 1)
        return 208 + 8*(kp - 4) + 4*i
    A('s_barrier')
    def p2_step(st, areg, first=False, npipe=2):
        A.wait(vm=bttok[2*st+1])
        n = 0
        for i in range(2):
            for j in range(2):
                k, r0 = bt_reg(2*st + j)
                A('%s %s, %s[%d:%d], v[%d:%d], %s' % (MFMA, acc(i, j), k, r0, r0+3, areg(i), areg(i)+3, '0' if first else acc(i, j)))
                if n in (0, 2) and npipe: npipe()
                n += 1
    for kp in range(6):
        p2_step(kp, lambda i: own_frag(kp, i), first=(kp == 0), npipe=lambda: pipe(1))
        if kp == 2:
            A.wait(vm=toks['hst'])
            A('s_lshl_b32 s3, s%d, 2' % sR); A('s_add_u32 s3, s3, s%d' % sW); A('s_lshl_b32 s3, s3, 5'); A('s_add_u32 s%d, s3, 0x%x' % (sT0, WS_FH))
            A('s_lshl_b32 s3, s%d, 2' % sS); A('s_add_u32 s3, s3, s%d' % sT0)
            A('v_mov_b32 v1, s3')
            A('s_mov_b64 exec, 1')
            A.vm('global_store_dword v1, v40, s[44:45] sc1')
            A('s_mov_b64 exec, -1')
            A('v_lshl_add_u32 v37, v0, 2, s%d' % sT0)
            A('s_mov_b32 s86, 0x7f'); A('s_mov_b32 s87, 0')
    prog['own'] = True
    ST()
    rem = 84 - len(bttok)
    pipe(max(rem - 8, 0))
    toks['fh'] = A.vm('global_load_dword v43, v37, s[44:45] sc1')
    pipe(99)
    ST()
    poll('fh', 43, 37, None, None, toks['fh'])
    ST()
    ST.harvest()
    NR = 8
    atok = {}
    def a_gen():
        for n in range(72):
            un, rem = divmod(n, 12)
            if rem == 0:
                A('s_cmp_gt_u32 s%d, %d' % (sS, un))
                A('s_mov_b32 s%d, %d' % (sA, (un + 1)*4*12288))
                A('s_cselect_b32 s3, %d, 0' % (4*12288))
                A('s_sub_u32 s%d, s%d, s3' % (sA, sA))
                A('s_add_u32 s%d, s%d, s%d' % (sA, sA, sAb))
            elif rem % 4 == 0:
                A('s_add_u32 s%d, s%d, 4096' % (sA, sA))
            r0 = ACF + 4*(n % (2*NR))
            atok[n] = A.vm('buffer_load_dwordx4 v[%d:%d], v19, s[%d:%d], s%d offen offset:%d sc1' % (r0, r0+3, R_H, R_H+3, sA, (rem % 4)*1024))
            yield
    ag = a_gen()
    def anext():
        next(ag, None)
    for n in range(2*NR - 2): anext()
    for st in range(36):
        A.wait(vm=atok[2*st+1])
        p2_step(6 + st, lambda i: ACF + 4*((2*st + i) % (2*NR)), npipe=anext)
    ST()
    A('v_mul_u32_u24 v10, 272, v36'); A('v_lshl_add_u32 v10, v38, 4, v10')
    A('s_mul_i32 s3, s%d, 17408' % sW); A('s_add_u32 s3, s3, %d' % RING0); A('v_add_u32 v10, s3, v10')
    A('s_lshl_b32 s3, s%d, 4' % sW)
    A('v_add_u32 v11, s3, v5'); A('v_mul_u32_u24 v11, 272, v11'); A('v_lshl_add_u32 v11, v6, 4, v11'); A('v_add_u32 v11, %d, v11' % RING0)
    for it in range(1, 4): A('s_mov_b32 s%d, %d' % (sD[it], DR[it]*1792))
    for i in range(2):
        for j in range(2):
            for z in range(4):
                c0 = (ACS if i == 0 else WB) + 16*j + 4*z
                A.ds('ds_write_b128 v10, v[%d:%d] offset:%d' % (c0, c0+3, i*8704 + j*128 + z*32))
    A.wait_all(vm=False)
    A('s_barrier')
    t = {}
    for it in range(4):
        for pw in range(4):
            o = ACF + 16*it + 4*pw
            t[(it, pw)] = A.ds('ds_read_b128 v[%d:%d], v11 offset:%d' % (o, o+3, pw*17408 + it*1088))
    for it in range(4):
        o = RES + 4*it
        for pw in range(4):
            A.wait(lg=t[(it, pw)])
            p = ACF + 16*it + 4*pw
            A('v_pk_add_f32 v[%d:%d], v[%d:%d], v[%d:%d]' % (o, o+1, o, o+1, p, p+1))
            A('v_pk_add_f32 v[%d:%d], v[%d:%d], v[%d:%d]' % (o+2, o+3, o+2, o+3, p+2, p+3))
        A.vm('buffer_store_dwordx4 v[%d:%d], v8, s[%d:%d], %s offen %s' % (o, o+3, R_OUT, R_OUT+3, 's%d' % sD[it] if it else '0', P.get('out_flags', '')))
    ST()
    A('L_fin0:')
    A('s_cmp_lg_u32 s%d, 0' % sW)
    A('s_cbranch_scc1 L_fin')
    A('s_waitcnt vmcnt(4)') if False else None
    A('v_readfirstlane_b32 s3, v254')
    A('s_cmp_lg_u32 s3, 255')
    A('s_cbranch_scc1 L_fin')
    A('v_mov_b32 v1, s%d' % sEp); A('v_mov_b32 v2, 0')
    A('global_store_dword v2, v1, s[70:71] sc1')
    A('L_fin:')
    ST.dump(sW)
    A('s_endpgm')
    for l in OOL: A(l)

    Q = Asm(); SQ = Stamps(Q, stamps, npair=5, base=92)
    SQ.n = 1
    R_W2, R_CRE, R_CIM = 48, 52, 56
    sIt, sL, sK = 5, 6, 7
    Q('L_pretile:')
    Q('s_sub_u32 s%d, s%d, 28' % (sT0, sT0)); Q('s_lshl_b32 s%d, s%d, 2' % (sT1, sT1)); Q('s_add_u32 s%d, s%d, s%d' % (sT0, sT0, sT1))
    Q('s_lshl_b32 s%d, s%d, 2' % (sT0, sT0)); Q('s_add_u32 s%d, s%d, s%d' % (sIt, sT0, sW))
    Q('s_mov_b32 s62, 999')
    Q('s_cmp_lt_u32 s%d, 38' % sIt)
    Q('s_cbranch_scc0 L_pt_m1')
    Q('s_mul_i32 s60, s%d, 3' % sIt); Q('s_add_u32 s61, s60, 1'); Q('s_add_u32 s62, s60, 2')
    Q('s_branch L_pt_m3')
    Q('L_pt_m1:')
    Q('s_cmp_lt_u32 s%d, 120' % sIt)
    Q('s_cbranch_scc0 L_pt_m2')
    Q('s_add_u32 s60, s%d, %d' % (sIt, 114 - 38)); Q('s_add_u32 s61, s%d, %d' % (sIt, 196 - 38))
    Q('s_branch L_pt_m3')
    Q('L_pt_m2:')
    Q('s_lshl_b32 s60, s%d, 1' % sIt); Q('s_add_u32 s60, s60, %d' % (196 + 82 - 240)); Q('s_add_u32 s61, s60, 1')
    Q('L_pt_m3:')
    SLOT = 9216
    Q('s_mul_i32 s%d, s%d, %d' % (sL, sW, 3*SLOT))
    Q('v_lshrrev_b32 v34, 3, v0'); Q('v_and_b32 v35, 7, v0'); Q('v_lshrrev_b32 v38, 5, v0'); Q('v_and_b32 v36, 31, v0')
    Q('v_lshlrev_b32 v1, 1, v34'); Q('v_and_b32 v1, 4, v1'); Q('v_xor_b32 v1, v1, v35')
    Q('v_mul_u32_u24 v2, 896, v34')
    Q('v_lshl_add_u32 v1, v1, 4, v2')
    for k in range(4): Q('v_add_u32 v%d, %d, v1' % (5+k, k*(8*896 - 1024)))
    Q('v_lshrrev_b32 v1, 1, v34'); Q('v_xor_b32 v1, v1, v35')
    Q('v_xor_b32 v3, 4, v1')
    Q('v_lshl_add_u32 v1, v1, 4, v2'); Q('v_lshl_add_u32 v3, v3, 4, v2')
    for k in range(4): Q('v_add_u32 v%d, %d, v%d' % (9+k, k*(8*896 - 1024), 3 if k & 1 else 1))
    Q('v_bfe_u32 v46, v0, 2, 2'); Q('v_and_b32 v47, 3, v0')
    Q('v_lshlrev_b32 v1, 3, v47'); Q('v_lshl_add_u32 v1, v46, 7, v1')
    Q('v_lshrrev_b32 v46, 1, v46'); Q('v_lshl_add_u32 v1, v46, 6, v1')
    Q('v_bfe_u32 v46, v0, 4, 1'); Q('v_lshl_add_u32 v1, v46, 5, v1')
    Q('v_lshl_add_u32 v1, v38, 9, v1')
    Q('v_add_u32 v17, s%d, v1' % sL); Q('v_xor_b32 v18, 64, v17')
    Q('v_bfe_u32 v1, v0, 1, 3'); Q('v_lshlrev_b32 v1, 4, v1'); Q('v_lshl_add_u32 v1, v36, 7, v1'); Q('v_lshl_add_u32 v1, v38, 3, v1')
    Q('v_add_u32 v20, s%d, v1' % sL)
    Q('v_lshlrev_b32 v19, 4, v0')
    Q('v_mov_b32 v200, 0x%x' % (WS_FB + 4092))
    Q('v_lshlrev_b32 v21, 3, v0'); Q('v_add_u32 v21, s%d, v21' % sL)
    Q('v_lshlrev_b32 v22, 5, v38'); Q('v_add_u32 v22, s%d, v22' % sL)
    Q('s_waitcnt lgkmcnt(0)')
    Q('s_add_u32 s70, s44, 0x%x' % WS_EPOCH); Q('s_addc_u32 s71, s45, 0')
    Q('s_load_dword s%d, s[70:71], 0' % sEp)
    srd(Q, R_W2, S_W2, 1792*896); srd(Q, R_CRE, S_CRE, 448*896); srd(Q, R_CIM, S_CIM, 448*896); srd(Q, R_BT, S_WS, SZ_BT, WS_BT)
    def dec_w2(it):
        Q('s_mul_i32 s%d, s%d, 9363' % (sT0, it)); Q('s_lshr_b32 s%d, s%d, 16' % (sT0, sT0))
        Q('s_mul_i32 s%d, s%d, 7' % (sT1, sT0)); Q('s_sub_u32 s%d, s%d, s%d' % (sT1, it, sT1))
    def dec_c(it):
        Q('s_sub_u32 s3, s%d, 196' % it); Q('s_and_b32 s%d, s3, 1' % sT3); Q('s_lshr_b32 s3, s3, 1')
        Q('s_mul_i32 s%d, s3, 37' % sT0); Q('s_lshr_b32 s%d, s%d, 8' % (sT0, sT0))
        Q('s_mul_i32 s%d, s%d, 7' % (sT1, sT0)); Q('s_sub_u32 s%d, s3, s%d' % (sT1, sT1))
    for k in range(3):
        it = 60 + k
        if k == 2:
            Q('s_cmp_ge_u32 s%d, 196' % it); Q('s_cbranch_scc1 L_pt_ld_end')
        else:
            Q('s_cmp_ge_u32 s%d, 196' % it); Q('s_cbranch_scc1 L_pt_ld_c%d' % k)
        dec_w2(it)
        Q('s_mul_i32 s%d, s%d, %d' % (sT2, sT0, 64*896)); Q('s_lshl_b32 s3, s%d, 7' % sT1); Q('s_add_u32 s%d, s%d, s3' % (sT2, sT2))
        for hf in range(2):
            Q('s_add_u32 m0, s%d, %d' % (sL, k*SLOT + hf*4096))
            for kk in range(4): Q('buffer_load_dwordx4 v%d, s[%d:%d], s%d offen offset:%d lds' % (5+kk, R_W2, R_W2+3, sT2, 1024*kk))
            if hf == 0: Q('s_add_u32 s%d, s%d, %d' % (sT2, sT2, 32*896))
        if k < 2:
            Q('s_branch L_pt_ld_n%d' % k)
            Q('L_pt_ld_c%d:' % k)
            dec_c(it)
            Q('s_lshl_b32 s3, s%d, 1' % sT0); Q('s_add_u32 s3, s3, s%d' % sT3); Q('s_mul_i32 s%d, s3, %d' % (sT2, 32*896))
            Q('s_lshl_b32 s3, s%d, 7' % sT1); Q('s_add_u32 s%d, s%d, s3' % (sT2, sT2))
            Q('v_lshlrev_b32 v37, 1, v0'); Q('v_add_u32 v37, s3, v37')
            for i, b in enumerate((S_LRE, S_LIM, S_LDT)): Q('global_load_ushort v%d, v37, s[%d:%d]' % (24+4*k+i, b, b+1))
            for hf, R in enumerate((R_CRE, R_CIM)):
                Q('s_add_u32 m0, s%d, %d' % (sL, k*SLOT + hf*4096))
                for kk in range(4): Q('buffer_load_dwordx4 v%d, s[%d:%d], s%d offen offset:%d lds' % (9+kk, R, R+3, sT2, 1024*kk))
            Q('L_pt_ld_n%d:' % k)
    Q('L_pt_ld_end:')
    SQ()
    Q('s_waitcnt lgkmcnt(0)')
    Q('s_barrier')
    Q('s_add_u32 s%d, s%d, 2' % (sEp, sEp)); Q('s_or_b32 s%d, s%d, 1' % (sTag, sEp)); Q('v_mov_b32 v40, s%d' % sTag)
    Q('s_cmp_lg_u32 s%d, 0' % sW)
    Q('s_cbranch_scc1 L_pt_nocount')
    Q('s_mov_b64 exec, 1')
    Q('v_mov_b32 v254, 1'); Q('v_mov_b32 v255, 0')
    Q('global_atomic_add v254, v255, v254, s[%d:%d] sc0 sc1' % (S_DBG, S_DBG+1))
    Q('s_mov_b64 exec, -1')
    Q('s_waitcnt vmcnt(1)')
    Q('s_branch L_pt_go')
    Q('L_pt_nocount:')
    Q('s_waitcnt vmcnt(0)')
    Q('L_pt_go:')
    SQ()
    Q('s_mov_b32 s%d, 0' % sK)
    Q('L_pt_loop:')
    Q('s_mov_b32 s63, s60')
    Q('s_cmp_ge_u32 s63, 196')
    Q('s_cbranch_scc1 L_pt_c')
    dec_w2(63)
    Q('s_lshl_b32 s64, s%d, 6' % sT1); Q('s_add_u32 s64, s64, s%d' % sT0)
    Q('s_lshl_b32 s%d, s%d, 2' % (sT1, sT1)); Q('s_and_b32 s3, s%d, 3' % sT0); Q('s_add_u32 s%d, s%d, s3' % (sT1, sT1))
    Q('s_mul_i32 s%d, s%d, 7' % (sT1, sT1)); Q('s_lshr_b32 s3, s%d, 2' % sT0); Q('s_add_u32 s%d, s%d, s3' % (sT1, sT1))
    Q('s_mul_i32 s%d, s%d, 12288' % (sT1, sT1)); Q('s_add_u32 s%d, s%d, 4096' % (sT2, sT1))
    for kp in range(4):
        for j in range(2):
            o = 48 + 8*kp + 4*j
            Q.ds('ds_read_b64_tr_b16 v[%d:%d], v%d offset:%d' % (o, o+1, 17+j, kp*2048))
            toks[('w', kp, j)] = Q.ds('ds_read_b64_tr_b16 v[%d:%d], v%d offset:%d' % (o+2, o+3, 17+j, kp*2048 + 1024))
    for kp in range(4):
        for j in range(2):
            o = 48 + 8*kp + 4*j
            Q.wait(lg=toks[('w', kp, j)])
            Q('buffer_store_dwordx4 v[%d:%d], v19, s[%d:%d], s%d offen offset:%d sc1' % (o, o+3, R_BT, R_BT+3, sT1 + (kp >> 1), (kp & 1)*2048 + j*1024))
    Q('s_branch L_pt_next')
    Q('L_pt_c:')
    dec_c(63)
    Q('s_lshl_b32 s64, s%d, 6' % sT0); Q('s_lshl_b32 s3, s%d, 1' % sT1); Q('s_add_u32 s64, s64, s3'); Q('s_add_u32 s64, s64, s%d' % sT3); Q('s_add_u32 s64, s64, 28')
    Q('s_mul_i32 s%d, s%d, 28' % (sT0, sT0)); Q('s_add_u32 s%d, s%d, s%d' % (sT0, sT0, sT1)); Q('s_mul_i32 s%d, s%d, 12288' % (sT0, sT0))
    Q('s_lshl_b32 s3, s%d, 10' % sT3); Q('s_add_u32 s%d, s%d, s3' % (sT0, sT0)); Q('s_add_u32 s%d, s%d, 8192' % (sT0, sT0))
    for un in range(8):
        Q('v_xor_b32 v%d, %d, v20' % (160+un, 16*un))
    for un in range(8):
        Q.ds('ds_read_b64 v[%d:%d], v%d' % (48+4*un, 49+4*un, 160+un)); Q.ds('ds_read_b64 v[%d:%d], v%d offset:4096' % (50+4*un, 51+4*un, 160+un))
    lam_base(Q, 24, 25, 26)
    Q('v_mul_f32 v44, v24, v26'); Q('v_mul_f32 v45, v25, v26')
    Q('v_mul_f32 v44, %s, v44' % f2u(LOG2E)); Q('v_mul_f32 v45, %s, v45' % f2u(INV2PI))
    lam_pow(Q, 1, 44, 45, 46, 47, 43)
    Q('v_add_f32 v46, -1.0, v46')
    Q('v_mul_f32 v43, v24, v24'); Q('v_fmac_f32 v43, v25, v25'); Q('v_rcp_f32 v43, v43')
    Q('v_mul_f32 v44, v46, v24'); Q('v_fmac_f32 v44, v47, v25')
    Q('v_mul_f32 v45, v47, v24'); Q('v_fma_f32 v45, -v46, v25, v45')
    Q('v_add_f32 v43, v43, v43')
    Q('v_mul_f32 v44, v44, v43'); Q('v_mul_f32 v45, v45, v43')
    Q.ds('ds_write_b64 v21, v[44:45] offset:8192')
    Q.wait_all(vm=False)
    for un in range(8):
        Q.ds('ds_read_b128 v[%d:%d], v22 offset:%d' % (80+8*un, 83+8*un, 8192 + un*64))
        toks[('c', un)] = Q.ds('ds_read_b128 v[%d:%d], v22 offset:%d' % (84+8*un, 87+8*un, 8192 + un*64 + 16))
    for un in range(8):
        w, a = un >> 1, un & 1
        Q.wait(lg=toks[('c', un)])
        o = 144 + 4*(un & 3)
        for e in range(4):
            sre, sim = 48 + 4*un + (e >> 1), 50 + 4*un + (e >> 1)
            if e & 1:
                Q('v_and_b32 v168, 0xffff0000, v%d' % sre); Q('v_and_b32 v169, 0xffff0000, v%d' % sim)
            else:
                Q('v_lshlrev_b32 v168, 16, v%d' % sre); Q('v_lshlrev_b32 v169, 16, v%d' % sim)
            cr = 80 + 8*un + 2*e
            Q('v_pk_mul_f32 v[170:171], v[168:169], v[%d:%d] op_sel_hi:[1,0] neg_hi:[1,0]' % (cr, cr+1))
            Q('v_pk_fma_f32 v[170:171], v[168:169], v[%d:%d], v[170:171] op_sel:[1,1,0] op_sel_hi:[0,1,1] neg_lo:[1,0,0] neg_hi:[1,0,0]' % (cr, cr+1))
            Q('v_cvt_pk_bf16_f32 v%d, v170, v171' % (o+e))
        Q('buffer_store_dwordx4 v[%d:%d], v19, s[%d:%d], s%d offen offset:%d sc1' % (o, o+3, R_BT, R_BT+3, sT0, a*2048))
        if a == 1 and w < 3: Q('s_add_u32 s%d, s%d, %d' % (sT0, sT0, 7*12288))
    Q('L_pt_next:')
    Q('s_lshl_b32 s64, s64, 2'); Q('s_add_u32 s64, s64, 0x%x' % WS_FB)
    Q('s_mov_b32 m0, s%d' % sK)
    Q('v_writelane_b32 v200, s64, m0')
    for v in (17, 18, 20, 21, 22): Q('v_add_u32 v%d, %d, v%d' % (v, SLOT, v))
    for i in range(3): Q('v_mov_b32 v%d, v%d' % (24+i, 28+i))
    Q('s_mov_b32 s60, s61'); Q('s_mov_b32 s61, s62'); Q('s_mov_b32 s62, 999')
    Q('s_add_u32 s%d, s%d, 1' % (sK, sK))
    Q('s_cmp_lt_u32 s60, 999')
    Q('s_cbranch_scc1 L_pt_loop')
    SQ()
    Q('s_lshl_b32 s3, 1, s%d' % sK); Q('s_sub_u32 s3, s3, 1')
    Q('s_waitcnt vmcnt(0)')
    Q('s_mov_b32 exec_lo, s3'); Q('s_mov_b32 exec_hi, 0')
    Q('global_store_dword v200, v40, s[44:45] sc1')
    Q('s_mov_b64 exec, -1')
    SQ()
    if stamps:
        SQ.harvest()
        Q('s_mov_b32 s3, 0')
    Q('s_branch L_fin0')
    Q('L_done:')
    Q('s_endpgm')
    Q('L_end:')
    return A.finish() + Q.finish()

def generate(stamps=False, P=None):
    out = []
    out.append('; @launch grid=(256,1,1) block=(256,1,1) lds=157696')
    out.append('.amdgcn_target "amdgcn-amd-amdhsa--gfx950"')
    out.append('.text')
    out.append('.globl %s\n.p2align 8\n.type %s,@function' % (KN, KN))
    out += gen(stamps, P)
    out.append('.section .rodata,"a"')
    out.append(kd(KN, 512, 256))
    return '\n'.join(out) + '\n'

if __name__ == '__main__':
    stamps = '--stamps' in sys.argv
    path = [a for a in sys.argv[1:] if not a.startswith('--')]
    P = {}
    for a in sys.argv[1:]:
        if a.startswith('--P'):
            k, v = a[3:].split('='); P[k] = int(v) if v.lstrip('-').isdigit() else v
    open(path[0] if path else 'k2.s', 'w').write(generate(stamps, P))
```
